```python
import torch

def _softmax(x, axis=-1):
    return torch.softmax(x, dim=axis)

def _gelu(x):
    return torch.nn.functional.gelu(x, approximate='tanh')

def _silu(x):
    return torch.nn.functional.silu(x)

def _sigmoid(x):
    return torch.sigmoid(x)

def _layernorm(x, axis=-1, eps=1e-05):
    m = x.mean(dim=axis, keepdim=True)
    v = x.var(dim=axis, keepdim=True, unbiased=False)
    return (x - m) / torch.sqrt(v + eps)

def _scatter_add(tgt, idx, src, axis=0):
    return tgt.clone().index_add_(axis, idx, src)

def _segment_sum(src, seg, n):
    out = torch.zeros((n,) + src.shape[1:], dtype=src.dtype)
    return out.index_add_(0, seg, src)

def _pad(x, pw):
    flat = tuple((v for pair in reversed(pw) for v in pair))
    return torch.nn.functional.pad(x, flat)
kernel_name = 'adaLN_cond__sliding_block_cached__mixer_gmlp__prompt'

def setup_inputs():

    _w = lambda a: (lambda t: t.to(torch.bfloat16) if t.is_floating_point() else t)(torch.as_tensor(a))

    def _A_setup():
        B, Sq, D = (1, 2048, 576)
        Hq, Hkv, Sk, Dh = (32, 16, 2048, 128)
        assert Hq % Hkv == 0, (Hq, Hkv)
        return {'x': _w((lambda *s: torch.randn(*s, dtype=torch.bfloat16) * 0.1)(B, Sq, D)), 'k_cache': _w((lambda *s: torch.randn(*s, dtype=torch.bfloat16) * 0.8)(B, Hkv, Sk, Dh)), 'v_cache': _w((lambda *s: torch.randn(*s, dtype=torch.bfloat16) * 1.6)(B, Hkv, Sk, Dh)), 'wq': _w((lambda *s: torch.randn(*s, dtype=torch.bfloat16) * 0.8)(D, Hq * Dh) * D ** (-0.5)), 'wo': _w((lambda *s: torch.randn(*s, dtype=torch.bfloat16) * 1.6)(Hq * Dh, D) * (Hq * Dh) ** (-0.5))}
    _A_in = _A_setup()

    def _B_setup():
        B, S, D, F = (1, 2048, 576, 4608)
        Fh = F // 2
        return {'x': _w((lambda *s: torch.randn(*s, dtype=torch.bfloat16) * 0.1)(B, S, D)), 'w_in': _w((lambda *s: torch.randn(*s, dtype=torch.bfloat16) * 1.6)(D, 2 * Fh)), 'w_sp': _w(0.01 * (lambda *s: torch.randn(*s, dtype=torch.bfloat16) * 1.6)(S, S)), 'b_sp': _w(1.0 + 0.01 * (lambda *s: torch.randn(*s, dtype=torch.bfloat16) * 0.2)(S)), 'w_out': _w((lambda *s: torch.randn(*s, dtype=torch.bfloat16) * 0.2)(Fh, D))}
    _B_in = _B_setup()
    return {'A_x': _A_in['x'], 'A_k_cache': _A_in['k_cache'], 'A_v_cache': _A_in['v_cache'], 'A_wq': _A_in['wq'], 'A_wo': _A_in['wo'], 'B_x': _B_in['x'], 'B_w_in': _B_in['w_in'], 'B_w_sp': _B_in['w_sp'], 'B_b_sp': _B_in['b_sp'], 'B_w_out': _B_in['w_out'], 'c': _w((lambda *s: torch.randn(*s, dtype=torch.bfloat16) * 0.8)(1, 576) * 8.0), 'w_mod': _w((lambda *s: torch.randn(*s, dtype=torch.bfloat16) * 0.8)(576, 6 * 576) * 576 ** (-0.5) * 8.0)}

def reference(A_x, A_k_cache, A_v_cache, A_wq, A_wo, B_x, B_w_in, B_w_sp, B_b_sp, B_w_out, c, w_mod):

    def _A_ref(x, k_cache, v_cache, wq, wo):
        B, Sq, D = x.shape
        Hq, Dh = (32, 128)
        Hkv, Sk = (k_cache.shape[1], k_cache.shape[2])
        W = min(4096, max(256, Sk // 4))
        rep = Hq // Hkv
        q = (lambda x, *d: x.permute(*d))((x @ wq).reshape(B, Sq, Hq, Dh), 0, 2, 1, 3)
        k = (lambda x, n, axis: torch.repeat_interleave(x, n, dim=axis))(k_cache[:, :, Sk - W:, :], rep, axis=1)
        v = (lambda x, n, axis: torch.repeat_interleave(x, n, dim=axis))(v_cache[:, :, Sk - W:, :], rep, axis=1)
        scores = torch.einsum('bhqd,bhkd->bhqk', q, k) * Dh ** (-0.5)
        p = _softmax(scores, axis=-1)
        o = torch.einsum('bhqk,bhkd->bhqd', p, v)
        return (lambda x, *d: x.permute(*d))(o, 0, 2, 1, 3).reshape(B, Sq, Hq * Dh) @ wo

    def _B_ref(x, w_in, w_sp, b_sp, w_out):
        B, S, D = x.shape
        F = w_in.shape[-1]
        Fh = F // 2
        z = _gelu(torch.einsum('bsd,df->bsf', x, w_in))
        z1 = z[..., :Fh].clone()
        z2 = _layernorm(z[..., Fh:], axis=-1)
        g = torch.einsum('ts,bsf->btf', w_sp, z2) + b_sp[None, :, None]
        return torch.einsum('bsf,fd->bsd', z1 * g, w_out)
    x = A_x
    mod = (_silu(c) @ w_mod).reshape(c.shape[0], 6, 1, -1)
    sa, ca, ga, sb, cb, gb = (mod[:, 0].clone(), mod[:, 1].clone(), mod[:, 2].clone(), mod[:, 3].clone(), mod[:, 4].clone(), mod[:, 5].clone())
    h = _layernorm(x, axis=-1) * (1 + ca) + sa
    x = x + ga * _A_ref(h, A_k_cache, A_v_cache, A_wq, A_wo)
    h = _layernorm(x, axis=-1) * (1 + cb) + sb
    x = x + gb * _B_ref(h, B_w_in, B_w_sp, B_b_sp, B_w_out)
    return x
```

```python
import re
class K:
    def __init__(s,name): s.name=name; s.L=[]; s.vm=[]
    def e(s,*t):
        for x in t:
            for y in x.split('\n'):
                y=y.strip()
                if y: s.L.append(y)
    def vmop(s,txt,tag): s.L.append(txt); s.vm.append(tag)
    def wait(s,pred,extra=''):
        idx=[i for i,t in enumerate(s.vm) if pred(t)]
        if not idx:
            if extra: s.L.append('s_waitcnt '+extra)
            return
        n=len(s.vm)-1-idx[-1]; s.vm=s.vm[idx[-1]+1:]
        s.L.append(('s_waitcnt vmcnt(%d) %s'%(min(n,63),extra)).strip())
    def put(s,f):
        if callable(f): f()
        elif isinstance(f,tuple): s.vmop(*f)
        elif isinstance(f,list):
            for x in f: s.put(x)
        else: s.e(f)
    def weave(s,mf,fill):
        n=len(mf); i=0
        for j,m in enumerate(mf):
            s.e(m)
            upto=((j+1)*len(fill)+n-1)//n
            while i<upto: s.put(fill[i]); i+=1
def regs(tok):
    tok=tok.strip().lstrip('-')
    if tok.startswith('abs('): tok=tok[4:-1]
    m=re.fullmatch(r'([vas])(\d+)',tok)
    if m: return {(m.group(1),int(m.group(2)))}
    m=re.fullmatch(r'([vas])\[(\d+):(\d+)\]',tok)
    if m: return {(m.group(1),i) for i in range(int(m.group(2)),int(m.group(3))+1)}
    if tok=='vcc': return {('s','vcc')}
    return set()
TRANS=('v_exp_f32','v_log_f32','v_rcp_f32','v_rsq_f32','v_sqrt_f32')
def parse(l):
    op,_,r=l.partition(' ')
    ops=[o.strip() for o in r.split(',')]
    ops=[o.split(' ')[0] for o in ops]
    R=[regs(o) for o in ops]; U=lambda x:set().union(*x) if x else set()
    d=dict(op=op,w=set(),r=set(),c=set(),cls='o')
    if op.startswith('v_mfma'): d.update(cls='m',w=R[0],r=R[1]|R[2],c=R[3],p=8 if '32x32' in op else 4)
    elif op.startswith('v_permlane'): d.update(cls='v',w=R[0]|R[1],r=R[0]|R[1])
    elif op.startswith('v_'):
        d.update(cls='v',w=R[0],r=U(R[1:]))
        if op.startswith('v_fmac') or 'dpp' in op: d['r']=d['r']|R[0]
    elif op.startswith('ds_read'): d.update(cls='x',w=R[0],r=U(R[1:]))
    elif op.startswith('ds_'): d.update(cls='x',r=U(R))
    elif op.startswith('buffer_load'):
        if ' lds' in l: d.update(cls='x',r=U(R),lds=1)
        else: d.update(cls='x',w=R[0],r=U(R[1:]))
    elif op.startswith('buffer_'): d.update(cls='x',r=U(R),st=R[0] if 'x4' in op else set())
    elif op.startswith('s_') and ops and ops[0]=='m0': d.update(m0=1)
    return d
def need(a,b):
    n=0
    if a['cls']=='m':
        big=a['p']==8
        if b['cls']=='m':
            if a['w']&b['r']: n=12 if big else 8
            elif a['w']&b['c'] and a['w']!=b['c']: n=10 if big else 6
            elif a['w']&b['w'] and a['w']!=b['c']: n=12 if big else 8
        elif b['cls'] in 'vx':
            if a['w']&(b['r']|b['w']): n=12 if big else 8
            elif b['cls']=='v' and a['c']&b['w']: n=7 if big else 3
    elif a['cls']=='v':
        vw={x for x in a['w'] if x[0]!='s'}; sw=a['w']-vw
        if b['cls']=='m' and vw&(b['r']|b['c']): n=2
        if b['cls']=='v':
            if vw&b['r']:
                if b['op'].startswith('v_permlane') or 'dpp' in b['op']: n=2
                elif b['op'].startswith('v_read'): n=1
                elif a['op'] in TRANS: n=max(n,1)
            if sw&b['r']: n=max(n,2)
        if b['cls']=='x' and sw&b['r']: n=5
        if b['op'].startswith('s_cbranch_vcc') and sw: n=max(n,1)
    elif a.get('st') and b['cls'] in 'vm' and a['st']&b['w']: n=2
    elif a.get('m0') and b.get('lds'): n=1
    return n
def hazard(L):
    out=[]; hist=[]
    for l in L:
        if l.endswith(':') or l.startswith(';'): out.append(l); continue
        b=parse(l); dist=0; pad=0
        for a,ws in reversed(hist):
            pad=max(pad,need(a,b)-dist); dist+=ws
            if dist>=13: break
        if pad>0: out.append('s_nop %d'%(pad-1)); hist.append((parse('s_nop 0'),pad))
        ws=int(l.split()[1])+1 if l.startswith('s_nop') else 1
        out.append(l); hist.append((b,ws)); hist=hist[-16:]
    return out
def finish(k,vg,ag=0):
    body='\n'.join(hazard(k.L))
    ao=(vg+3)//4*4
    txt=f""".globl {k.name}
.p2align 8
.type {k.name},@function
{k.name}:
{body}
"""
    kd=f""".p2align 6
.amdhsa_kernel {k.name}
  .amdhsa_next_free_vgpr {ao+ag}
  .amdhsa_next_free_sgpr 96
  .amdhsa_accum_offset {ao}
  .amdhsa_group_segment_fixed_size 0
  .amdhsa_kernarg_size 120
  .amdhsa_user_sgpr_count 2
  .amdhsa_user_sgpr_kernarg_segment_ptr 1
  .amdhsa_system_sgpr_workgroup_id_x 1
.end_amdhsa_kernel
"""
    return txt,kd
def looped(k,stages,U,lab,sc):
    n=len(stages); best=(0,0)
    for a in range(n):
        r=1
        while a+(r+1)*U<=n and stages[a+r*U:a+(r+1)*U]==stages[a:a+U]: r+=1
        if r>best[1]: best=(a,r)
    a,r=best
    if r<2:
        for s in stages: k.L+=s
        return
    for s in stages[:a]: k.L+=s
    k.e(f's_mov_b32 {sc}, {r}',f'{lab}:')
    for s in stages[a:a+U]: k.L+=s
    k.e(f's_sub_u32 {sc}, {sc}, 1',f's_cmp_lg_u32 {sc}, 0',f's_cbranch_scc1 {lab}')
    for s in stages[a+r*U:]: k.L+=s
A_X,A_K,A_V,A_WQ,A_WO,B_X,B_WIN,B_WSP,B_BSP,B_WOUT,A_C,W_MOD,D_OUT,D_DBG,D_WS=range(15)
WS=dict(MOD=(0,0x4000),XN=(0x10000,2359296),X1=(0x300000,2359296),H2=(0x600000,2359296),STAT=(0x900000,262144),
        O=(0x1000000,16777216),PART=(0x2000000,9437184),Z1=(0x3000000,9437184),Z2=(0x4000000,9437184),Y=(0x5000000,9437184))
def start(k,grid,srds):
    k.e(f's_cmp_ge_u32 s2, {grid}',f's_cbranch_scc1 {k.name}_end')
    for r,x,*n in srds: k.e(f's_load_dwordx2 s[{r}:{r+1}], s[0:1], {8*(D_WS if isinstance(x,str) else x)}')
    for r,x,*n in srds: k.e(f's_mov_b32 s{r+2}, {WS[x][1] if isinstance(x,str) else n[0]}',f's_mov_b32 s{r+3}, 0x20000')
def start2(k,srds):
    k.e('s_waitcnt lgkmcnt(0)')
    for r,x,*n in srds:
        if isinstance(x,str) and WS[x][0]: k.e(f's_add_u32 s{r}, s{r}, {WS[x][0]}',f's_addc_u32 s{r+1}, s{r+1}, 0')
def end(k): k.e(f'{k.name}_end:','s_endpgm')
```

```python
from fw import *
from krow import fb
TAU=72.0; BIAS=48.0
def mix(*ls):
    out=[]; n=max(len(l) for l in ls)
    for i in range(n):
        for l in ls:
            out+=l[(i*len(l))//n:((i+1)*len(l))//n]
    return out
def k1():
    k=K('k1_kernel'); S=[(4,A_WQ,4718592),(8,'XN'),(12,'O'),(16,A_K,8388608),(20,A_V,8388608),(40,'MOD')]
    start(k,256,S)
    k.e('v_lshrrev_b32 v2, 6, v0','v_and_b32 v1, 63, v0','v_readfirstlane_b32 s24, v2',
        's_and_b32 s26, s2, 3','s_lshl_b32 s26, s26, 2','s_bfe_u32 s3, s2, 0x20003','s_add_u32 s26, s26, s3',
        's_bfe_u32 s25, s2, 0x10002','s_lshl_b32 s25, s25, 3','s_lshr_b32 s3, s2, 5','s_add_u32 s25, s25, s3',
        's_lshl_b32 s34, s25, 2','s_add_u32 s34, s34, s24','s_lshl_b32 s28, s26, 9','s_mul_i32 s29, s34, 36864',
        's_lshl_b32 s36, s26, 19','s_add_u32 s36, s36, 393216','s_add_u32 s37, s36, 8192','s_mov_b32 s38, s36',
        's_lshl_b32 s35, s34, 18','s_lshl_b32 s3, s26, 13','s_add_u32 s35, s35, s3','s_lshl_b32 s30, s24, 12','s_lshl_b32 s33, s24, 11',
        'v_lshrrev_b32 v3, 5, v1','v_and_b32 v4, 31, v1','v_lshrrev_b32 v5, 4, v1','v_and_b32 v6, 15, v1','v_lshlrev_b32 v7, 3, v2')
    for i in range(4):
        k.e(f'v_add_u32 v8, {2*i}, v3','v_and_b32 v9, 3, v8','v_lshlrev_b32 v9, 2, v9','v_xor_b32 v9, v9, v4','v_add_u32 v8, v8, v7','v_lshlrev_b32 v8, 13, v8',f'v_lshl_add_u32 v{240+i}, v9, 4, v8')
    for i in range(2):
        k.e(f'v_add3_u32 v8, v7, v5, {4*i}','v_and_b32 v9, 15, v8','v_xor_b32 v9, v9, v6','v_lshlrev_b32 v8, 8, v8',f'v_lshl_add_u32 v{244+i}, v9, 4, v8',
            'v_lshlrev_b32 v9, 2, v5','v_xor_b32 v9, v9, v6',f'v_lshl_add_u32 v{246+i}, v9, 4, v8')
    k.e('v_and_b32 v8, 1, v5','v_lshlrev_b32 v9, 4, v6','v_lshl_add_u32 v9, v3, 8, v9','v_mul_u32_u24 v10, 18432, v8','v_add_u32 v248, v9, v10','v_lshl_add_u32 v252, v8, 17, v9',
        'v_lshlrev_b32 v249, 5, v3','v_add_u32 v249, 0x20000, v249','v_lshlrev_b32 v253, 4, v0')
    start2(k,S)
    def wl(s): return [[f's_add_u32 m0, s30, {16384*((s+6)%8)+1024*i}',(f'buffer_load_dwordx4 v{240+i}, s[4:7], s28 offen lds',s)]+(['s_add_u32 s28, s28, 262144'] if i==3 else []) for i in range(4)]
    def xl(s): return [[(f'buffer_load_dwordx4 v[{128+8*(s%8)+4*x}:{131+8*(s%8)+4*x}], v248, s[8:11], s29 offen offset:{512*x}',s)]+(['s_add_u32 s29, s29, 1024'] if x else []) for x in range(2)]
    def al(n):
        f=[]
        if n<15: f+=[[f's_add_u32 m0, s33, {16384*(n%4)+1024*i}',(f'buffer_load_dwordx4 v{244+i}, s[16:19], {"s36" if n<0 else "s37"} offen lds',('a',n))]+(['s_add_u32 s37, s37, 8192'] if i and n>=0 else []) for i in range(2)]
        if 0<=n<16: f+=[[f's_add_u32 m0, s33, {16384*(n%4)+8192+1024*i}',(f'buffer_load_dwordx4 v{246+i}, s[20:23], s38 offen lds',('a',n))]+(['s_add_u32 s38, s38, 8192'] if i else []) for i in range(2)]
        return f
    k.e('s_lshl_b32 s3, s24, 10','s_movk_i32 s39, 0x1000')
    for i in range(2): k.put([f's_add_u32 m0, s3, {131072+4096*i}',(f'buffer_load_dwordx4 v253, s[40:43], {"s39" if i else "0"} offen lds',0)])
    for s in range(8): k.put(xl(s)); k.put(wl(s))
    k.e('v_bfe_u32 v8, v1, 2, 2','v_and_b32 v9, 1, v1','v_bfe_u32 v10, v1, 1, 1','v_lshl_add_u32 v9, v9, 1, v10','v_lshlrev_b32 v9, 3, v9','v_and_b32 v10, 1, v5','v_lshl_add_u32 v9, v10, 5, v9',
        'v_lshl_add_u32 v10, v3, 3, v8','v_lshlrev_b32 v10, 9, v10','v_add_u32 v10, 0x10000, v10','v_lshl_add_u32 v11, v3, 2, v8','v_lshlrev_b32 v11, 8, v11')
    for T in range(4): k.e(f'v_xor_b32 v12, {T}, v8','v_lshl_add_u32 v12, v12, 6, v9',f'v_add_u32 v{224+T}, v12, v10',f'v_add_u32 v{236+T}, v12, v11')
    k.e('v_xor_b32 v8, v3, v6','v_lshlrev_b32 v8, 4, v8','v_lshl_add_u32 v228, v4, 8, v8')
    for ks in range(1,8): k.e(f'v_xor_b32 v{228+ks}, {32*ks}, v228')
    for i in range(128): k.e(f'v_accvgpr_write_b32 a{i}, 0')
    k.e('v_mov_b32 v250, 0','v_mov_b32 v251, 0',f's_mov_b32 s44, {fb(TAU)}',f's_mov_b32 s45, {fb(BIAS)}')
    def wrd(i):
        s,ks=divmod(i,2); sl=(s+6)%8
        f=[f'ds_read_b64_tr_b16 a[{128+32*(i%2)+4*T+2*h}:{129+32*(i%2)+4*T+2*h}], v{224+T%4} offset:{16384*(sl%4)+8192*ks+2048*h+256*(T//4)}' for T in range(8) for h in range(2)]
        if ks==0 and sl%4==0: f[0]=[f'v_xor_b32 v{224+T}, 0x10000, v{224+T}' for T in range(4)]+[f[0]]
        return f
    def asr(i): return [f'ds_read_b128 v[{200+4*x}:{203+4*x}], v249 offset:{64*i+16*(x%2)+(2304 if x<2 else 0)}' for x in range(4)]
    def unp(i):
        x=128+8*((i//2)%8)+4*(i%2)
        return [f'v_and_b32 v{216+e}, 0xffff0000, v{x+e//2}' if e&1 else f'v_lshlrev_b32 v{216+e}, 16, v{x+e//2}' for e in range(8)]
    fm=[f'v_fma_f32 v{216+e}, v{216+e}, v{200+e}, v{208+e}' for e in range(8)]
    def cv(i): return [f'v_cvt_pk_bf16_f32 v{192+4*(i%2)+e}, v{216+2*e}, v{217+2*e}' for e in range(4)]
    k.wait(lambda t:t==0); k.e('s_barrier'); k.put(asr(0)); k.put(wrd(0)); k.put(unp(0)); k.e('s_waitcnt lgkmcnt(0)'); k.put(fm); k.put(asr(1)); k.put(cv(0))
    pend=[]
    for i in range(36):
        s,ks=divmod(i,2)
        if ks==1 and s<17:
            k.wait(lambda t:t==s+1,'lgkmcnt(4)'); k.e('s_barrier')
            pend=mix(wl(s+8),xl(s+8)) if s<10 else al({10:0,11:1,12:2,13:-1}[s]) if s<14 else []
            ld=pend[:(len(pend)+1)//2]; pend=pend[len(ld):]
        else: k.e('s_waitcnt lgkmcnt(%d)'%(4 if i<35 else 0)); ld=pend; pend=[]
        mf=[f'v_mfma_f32_32x32x16_bf16 v[{16*T}:{16*T+15}], a[{128+32*(i%2)+4*T}:{131+32*(i%2)+4*T}], v[{192+4*(i%2)}:{195+4*(i%2)}], '+('0' if i==0 else f'v[{16*T}:{16*T+15}]') for T in range(8)]
        f=[]
        if i<35:
            r=wrd(i+1); f=mix(r[:8],unp(i+1))+['s_waitcnt lgkmcnt(8)']+mix(fm,r[8:])+(asr(i+2) if i<34 else [])+mix(cv(i+1),ld)
        k.weave(mf,f)
    def krd(blk): return [f'ds_read_b128 a[{128+4*ks}:{131+4*ks}], v{228+ks} offset:{16384*((blk-1)%4)}' for ks in range(8)]
    def vrd(blk): return [[f'ds_read_b64_tr_b16 a[{160+4*m+2*h}:{161+4*m+2*h}], v{236+m%4} offset:{16384*(blk%4)+8192+4096*(m//4)+2048*h}' for h in range(2)] for m in range(8)]
    k.wait(lambda t:t==('a',-1)); k.e('s_barrier','s_nop 1'); k.put(krd(0))
    for i in range(64): k.e(f'v_cvt_pk_bf16_f32 v{i}, v{2*i}, v{2*i+1}')
    def QK(h,first): return [f'v_mfma_f32_32x32x16_bf16 v[{64+16*h}:{79+16*h}], a[{128+4*ks}:{131+4*ks}], v[{32*h+4*ks}:{32*h+4*ks+3}], '+(f'v[{64+16*h}:{79+16*h}]' if ks else '0' if first else f'v[{112+16*h}:{127+16*h}]') for ks in range(8)]
    def PV(h): return [f'v_mfma_f32_32x32x16_bf16 a[{64*h+16*(m%4)}:{64*h+16*(m%4)+15}], a[{160+4*m}:{163+4*m}], v[{96+8*h+4*(m//4)}:{99+8*h+4*(m//4)}], a[{64*h+16*(m%4)}:{64*h+16*(m%4)+15}]' for m in range(8)]
    def SM(h,x):
        b=64+16*h+8*x; f=[f'v_exp_f32 v{b}, v{b}']
        for i in range(8):
            if i<7: f.append(f'v_exp_f32 v{b+i+1}, v{b+i+1}')
            elif True: f.append(f'v_cvt_pk_bf16_f32 v{96+8*h+4*x+2}, v{b+4}, v{b+5}')
            f.append(f'v_add_f32 v{250+h}, v{250+h}, v{b+i}')
            if i in (1,3,7): f.append(f'v_cvt_pk_bf16_f32 v{96+8*h+4*x+i//2}, v{b+i-1}, v{b+i}')
        return f
    def MX(h):
        b=64+16*h
        return [f'v_max3_f32 v144, v{b}, v{b+1}, v{b+2}']+[f'v_max3_f32 v144, v144, v{b+i}, v{b+i+1}' for i in range(3,15,2)]+[f'v_max_f32 v144, v144, v{b+15}']
    def CK(h): return MX(h)+['v_cmp_lt_f32 vcc, s44, v144','s_mov_b32 s46, RET']
    def full(): k.e('v_mov_b32 v145, v144','v_permlane32_swap_b32 v144, v145','v_max_f32 v144, v144, v145','v_add_f32 v144, s45, v144')
    def init(h):
        k.put(MX(h)); full()
        for i in range(16): k.e(f'v_sub_f32 v{64+16*h+i}, v{64+16*h+i}, v144',f'v_sub_f32 v{112+16*h+i}, 0, v144')
    def lag(n,l): return [[] for _ in range(n)]+l
    def grp(mf,fill,lagged=None):
        if not mf: k.put(fill); k.put(lagged or []); return
        F=[fill[(j*len(fill))//8:((j+1)*len(fill))//8]+([lagged[j]] if lagged else []) for j in range(8)]
        k.weave(mf,F)
    st=[]; save=k.L; pend=[]
    for b in range(-1,16):
        k.L=[]
        k.e('s_waitcnt lgkmcnt(%d)'%(0 if b<0 else 8))
        grp(QK(0,b<0) if b<15 else [], mix(sum(vrd(b)[4:],[]),SM(1,0)[:12])+SM(1,0)[12:] if b>=0 else [])
        if b<0: init(0)
        else:
            k.e('s_waitcnt lgkmcnt(0)'); grp(PV(0),SM(1,1)[:8]+mix(SM(1,1)[8:],pend)+(CK(0) if b<15 else [])); pend=[]
            if b<15: k.e('s_cbranch_vccnz k1_fix0','k1_rRET:')
        if b<15:
            k.wait(lambda t:t==('a',b+1)); k.e('s_barrier'); pend=al(b+4)
            grp(QK(1,b<0),mix(SM(0,0),pend[:2]),krd(b+2) if b<14 else None); pend=pend[2:]
        if b<0: k.put(vrd(0)[:4]); k.put(SM(0,1)); init(1)
        else:
            grp(PV(1),SM(0,1)+CK(1) if b<15 else [],lag(4,vrd(b+1)[:4]) if b<15 else None)
            if b<15: k.e('s_cbranch_vccnz k1_fix1','k1_rRET:')
        st.append(k.L)
    k.L=[]; looped(k,st,4,'k1_lp','s31'); n=0; sites=[[],[]]
    for l in k.L:
        if l.startswith('s_cbranch_vccnz'): sites[int(l[-1])].append(n)
        save.append(l.replace('RET',str(n)))
        if l.endswith('RET:'): n+=1
    k.L=save
    for h in range(2):
        k.e(f'v_mov_b32 v145, v{250+h}',f'v_permlane32_swap_b32 v{250+h}, v145',f'v_add_f32 v145, v145, v{250+h}','v_rcp_f32 v145, v145')
        for m in range(8):
            t=64+8*(m%2); p=80+4*(m%4)
            for e in range(8): k.e(f'v_accvgpr_read_b32 v{t+e}, a{64*h+8*m+e}')
            for e in range(8): k.e(f'v_mul_f32 v{t+e}, v{t+e}, v145')
            for e in range(4): k.e(f'v_cvt_pk_bf16_f32 v{p+e}, v{t+2*e}, v{t+2*e+1}')
            k.e(f'buffer_store_dwordx4 v[{p}:{p+3}], v252, s[12:15], s35 offen offset:{512*m}')
        k.e('s_add_u32 s35, s35, 4096')
    end(k)
    for h in range(2):
        k.e(f'k1_fix{h}:','s_nop 7'); full(); k.e('v_max_f32 v144, 0, v144','v_exp_f32 v145, -v144')
        for i in range(16): k.e(f'v_sub_f32 v{64+16*h+i}, v{64+16*h+i}, v144',f'v_sub_f32 v{112+16*h+i}, v{112+16*h+i}, v144')
        k.e(f'v_mul_f32 v{250+h}, v{250+h}, v145')
        for i in range(64): k.e(f'v_accvgpr_read_b32 v146, a{64*h+i}','v_mul_f32 v146, v146, v145',f'v_accvgpr_write_b32 a{64*h+i}, v146')
        for n in sites[h][:-1]: k.e(f's_cmp_eq_u32 s46, {n}',f's_cbranch_scc1 k1_r{n}')
        k.e('s_nop 1',f's_branch k1_r{sites[h][-1]}')
    return finish(k,256,192)
```

```python
from fw import *
from krow import fb
FR=0; RB=36
def gprolog(k,SW,Kr,rowmajor):
    k.e('v_lshrrev_b32 v12, 6, v0','v_and_b32 v1, 63, v0','v_readfirstlane_b32 s24, v12','s_mov_b32 s33, 3641','s_nop 0','s_mul_i32 s30, s24, 288','v_add_u32 v14, s30, v1')
    for i in range(5):
        k.e(f'v_add_u32 v15, {64*i}, v14','v_mul_lo_u32 v16, v15, s33','v_lshrrev_b32 v16, 16, v16','v_mul_u32_u24 v17, 18, v16','v_sub_u32 v15, v15, v17',
            'v_and_b32 v17, 0x73, v16','v_bfe_u32 v18, v16, 2, 1','v_lshl_add_u32 v17, v18, 3, v17','v_bfe_u32 v18, v16, 3, 1','v_lshl_add_u32 v17, v18, 2, v17',
            f'v_mul_u32_u24 v17, {SW}, v17',f'v_lshl_add_u32 v{2+i}, v15, 4, v17')
    k.e('s_lshl_b32 s30, s30, 4','v_lshrrev_b32 v12, 4, v1','v_and_b32 v13, 15, v1')
    if rowmajor: k.e(f'v_mul_u32_u24 v7, {Kr*2}, v13','v_lshl_add_u32 v7, v12, 4, v7',f'v_add_u32 v8, {Kr*32}, v7')
    else: k.e('v_lshlrev_b32 v7, 4, v1',f'v_add_u32 v8, {Kr*32}, v7')
    k.e('v_lshrrev_b32 v14, 5, v1','v_lshlrev_b32 v14, 4, v14','v_bfe_u32 v15, v1, 2, 3','v_add_u32 v14, v14, v15','v_mul_u32_u24 v14, 288, v14',
        'v_and_b32 v15, 3, v1','v_lshl_add_u32 v9, v15, 3, v14','v_add_u32 v10, 55296, v9','v_add_u32 v11, 55296, v10')
def wload(s,NS,SW,tag,adv=None):
    f=[]
    for i in range(5):
        m=f's_add_u32 m0, s30, {18432*(s%NS)+1024*i}'
        d=(f'buffer_load_dwordx4 v{2+i}, s[4:7], s28 offen lds',tag)
        f.append([m,'s_mov_b32 exec_hi, 0',d,'s_mov_b32 exec_hi, -1',adv or f's_add_u32 s28, s28, {64*SW}'] if i==4 else [m,d])
    return f
def rload(s,RR,rstep,tag):
    f=[]
    for ks in range(2):
        for tt in range(2):
            r=RB+16*(s%RR)+8*ks+4*tt
            f.append((f'buffer_load_dwordx4 a[{r}:{r+3}], v{7+tt}, s[8:11], s29 offen offset:{rstep*ks}',tag))
    f[-1]=[f[-1],f's_add_u32 s29, s29, {2*rstep}']
    return f
def frd(G,NS):
    s,g=divmod(G,6); ks,jb=divmod(g,3); sl=s%NS; f=[]
    for jj in range(3):
        for h in range(2):
            r=FR+12*(G%3)+4*jj+2*h
            f.append(f'ds_read_b64_tr_b16 a[{r}:{r+1}], v{9+sl//3} offset:{18432*(sl%3)+9216*ks+2304*h+32*(3*jb+jj)}')
    return f
def gstage(k,s,nst,NS,loads,acc,rs,extra=None):
    for g in range(6):
        G=6*s+g; ks,jb=divmod(g,3)
        last=G+1>=6*nst
        if g==4 and s+1<nst:
            k.wait(lambda t:t==s+1,'lgkmcnt(6)'); k.e('s_barrier')
        else: k.e('s_waitcnt lgkmcnt(%d)'%(0 if last else 6))
        mf=[]
        for jj in range(3):
            for tt in range(2):
                a=acc+8*(3*jb+jj)+4*tt; w=FR+12*(G%3)+4*jj; r=RB+16*rs+8*ks+4*tt
                mf.append(f'v_mfma_f32_16x16x32_bf16 v[{a}:{a+3}], a[{w}:{w+3}], a[{r}:{r+3}], v[{a}:{a+3}]')
        rd=frd(G+2,NS) if G+2<6*nst else []
        ld=loads[(g*len(loads))//6:((g+1)*len(loads))//6]
        ex=extra[(g*len(extra))//6:((g+1)*len(extra))//6] if extra else []
        fill=[[] for _ in range(6)]
        for i,x in enumerate(rd): fill[i].append(x)
        for i,x in enumerate(ld): fill[(1+3*i)%6].append(x)
        for i,x in enumerate(ex): fill[(i*6)//len(ex)].append(x)
        k.weave(mf,fill)
def gmain(k,nst,D,U,SW,rstep,acc,pre=None):
    NS=RR=U
    for s in range(D):
        k.put(rload(s,RR,rstep,s)); k.put(wload(s,NS,SW,s))
    if pre: pre()
    for i in range(72): k.e(f'v_mov_b32 v{acc+i}, 0')
    k.wait(lambda t:t==0); k.e('s_barrier'); k.put(frd(0,NS)); k.put(frd(1,NS))
    st=[]; save=k.L
    for s in range(nst):
        k.L=[]
        ld=[]
        if s+D<nst:
            w=wload(s+D,NS,SW,s+D); r=rload(s+D,RR,rstep,s+D); ld=[w[0],r[0],w[1],r[1],w[2],r[2],w[3],r[3],w[4]]
        gstage(k,s,nst,NS,ld,acc,s%RR); st.append(k.L)
    k.L=save; looped(k,st,U,k.name+'_lp','s31')
def packswap(k,acc,tmp,store):
    n=0
    for j in (0,2,4,6,8):
        for tt in ((0,1) if j<8 else (0,)):
            a=acc+8*j+4*tt; b=a+(8 if j<8 else 4); t=tmp+4*(n%3); n+=1
            k.e(f'v_cvt_pk_bf16_f32 v{t}, v{a}, v{a+1}',f'v_cvt_pk_bf16_f32 v{t+1}, v{a+2}, v{a+3}',
                f'v_cvt_pk_bf16_f32 v{t+2}, v{b}, v{b+1}',f'v_cvt_pk_bf16_f32 v{t+3}, v{b+2}, v{b+3}',
                f'v_permlane16_swap_b32 v{t}, v{t+2}',f'v_permlane16_swap_b32 v{t+1}, v{t+3}')
            store(t,j,tt)
def eaddr(k,ps,ts,tstride):
    k.e('v_and_b32 v17, 1, v12','v_lshrrev_b32 v18, 1, v12','v_lshl_add_u32 v14, v17, 1, v18',f'v_mul_u32_u24 v14, {ps}, v14',f'v_mul_u32_u24 v19, {ts}, v13',
        'v_add_u32 v14, v14, v19',f'v_add_u32 v15, {tstride}, v14','v_add_u32 v18, 16, v18',f'v_mul_u32_u24 v18, {ps}, v18',f'v_mul_u32_u24 v17, {tstride}, v17','v_add3_u32 v16, v17, v18, v19')
def fstore(k,srd,so,ps):
    return lambda t,j,tt: k.e(f'buffer_store_dwordx4 v[{t}:{t+3}], v{14+tt if j<8 else 16}, s[{srd}:{srd+3}], {so} offen offset:{2*ps*j if j<8 else 0}')
def ksplit(name,W,wbytes,Rn,Kr,D,U):
    k=K(name); S=[(4,W,wbytes),(8,Rn),(12,'PART')]; Kc=Kr//4
    start(k,256,S); gprolog(k,1152,Kr,False)
    k.e('s_and_b32 s27, s2, 3','s_bfe_u32 s26, s2, 0x20003','s_bfe_u32 s25, s2, 0x10002','s_lshl_b32 s25, s25, 3','s_lshr_b32 s3, s2, 5','s_add_u32 s25, s25, s3',
        f's_mul_i32 s28, s27, {Kc*1152}','s_mul_i32 s3, s26, 288','s_add_u32 s28, s28, s3',
        's_lshl_b32 s34, s25, 2','s_add_u32 s34, s34, s24',f's_mul_i32 s29, s34, {Kr*64}',f's_mul_i32 s3, s27, {Kc*32}','s_add_u32 s29, s29, s3',
        's_mul_i32 s35, s34, 36864','s_mul_i32 s3, s27, 2359296','s_add_u32 s35, s35, s3','s_mul_i32 s3, s26, 4608','s_add_u32 s35, s35, s3')
    start2(k,S); gmain(k,Kc//64,D,U,1152,1024,24,lambda:eaddr(k,256,16,18432))
    packswap(k,24,96,fstore(k,12,'s35',256)); end(k); return finish(k,108,36+16*U)
def map34(k):
    k.e('s_and_b32 s25, s2, 3','s_lshl_b32 s25, s25, 2','s_bfe_u32 s3, s2, 0x20003','s_add_u32 s25, s25, s3','s_bfe_u32 s26, s2, 0x10002','s_lshl_b32 s26, s26, 3',
        's_lshr_b32 s3, s2, 5','s_add_u32 s26, s26, s3','s_lshl_b32 s34, s25, 2','s_add_u32 s34, s34, s24',
        's_lshl_b32 s36, s34, 4','s_add_u32 s36, s36, s26','s_mul_i32 s37, s36, 9216','v_lshlrev_b32 v20, 4, v1')
def k4(D=4,U=7):
    k=K('k4_kernel'); S=[(4,'Z2'),(8,B_WSP,8388608),(12,'Y'),(16,'Z1'),(20,B_BSP,4096)]
    start(k,256,S); gprolog(k,288,2048,True); map34(k)
    k.e('s_mul_i32 s28, s26, 589824','s_lshl_b32 s29, s34, 17','s_mul_i32 s35, s34, 147456','s_mul_i32 s3, s26, 4608','s_add_u32 s35, s35, s3','s_lshl_b32 s38, s34, 6','v_lshlrev_b32 v21, 1, v13')
    start2(k,S)
    def pre():
        for tt in range(2): k.vmop(f'buffer_load_ushort v{22+tt}, v21, s[20:23], s38 offen offset:{32*tt}','e')
        for j in range(9):
            k.vmop(f'buffer_load_dwordx4 v[{108+4*j}:{111+4*j}], v20, s[16:19], s37 offen offset:{1024*(j%4)}','e')
            if j%4==3: k.e('s_add_u32 s37, s37, 4096')
        eaddr(k,256,16,73728)
    gmain(k,32,D,U,288,64,24,pre)
    k.e('v_lshlrev_b32 v22, 16, v22','v_lshlrev_b32 v23, 16, v23')
    for j in range(9):
        for tt in range(2):
            for i in range(4):
                a=24+8*j+4*tt+i; z=108+4*j+2*tt+i//2
                k.e(f'v_add_f32 v{a}, v{a}, v{22+tt}',f'v_and_b32 v17, 0xffff0000, v{z}' if i&1 else f'v_lshlrev_b32 v17, 16, v{z}',f'v_mul_f32 v{a}, v{a}, v17')
    packswap(k,24,96,fstore(k,12,'s35',256)); end(k); return finish(k,144,36+16*U)
def gelu(acc,i,t):
    a=f'v[{acc+i}:{acc+i+1}]'; T=f'v[{t}:{t+1}]'
    return [f'v_pk_mul_f32 {T}, {a}, {a}',f'v_pk_fma_f32 {T}, {T}, v[180:181], v[182:183]',f'v_pk_mul_f32 {T}, {T}, {a}',f'v_exp_f32 v{t}, v{t}',f'v_exp_f32 v{t+1}, v{t+1}',
            f'v_pk_add_f32 {T}, {T}, v[184:185]',f'v_rcp_f32 v{t}, v{t}',f'v_rcp_f32 v{t+1}, v{t+1}',f'v_pk_mul_f32 {a}, {a}, {T}']
def gelu_all(k,acc):
    for i in range(0,72,8):
        for st in zip(*[gelu(acc,i+2*q,168+2*q) for q in range(4)]): k.e(*st)
def k3(D=4,NS=6):
    k=K('k3_kernel'); S=[(4,B_WIN,5308416),(8,'H2'),(12,'Z2'),(16,'Z1'),(20,'STAT')]
    start(k,256,S); gprolog(k,9216,576,False); map34(k)
    k.e('s_mul_i32 s39, s26, 288','s_add_u32 s28, s39, 4608','s_mul_i32 s29, s34, 36864','s_mul_i32 s35, s26, 589824','s_mul_i32 s3, s34, 9216','s_add_u32 s35, s35, s3',
        's_lshl_b32 s38, s36, 8','s_lshl_b32 s40, s34, 12','v_lshlrev_b32 v21, 2, v1')
    start2(k,S)
    wl=lambda s:wload(s,NS,9216,s,'s_mov_b32 s28, s39' if s==8 else None)
    for s in range(D): k.put(rload(s,9,1024,s)); k.put(wl(s))
    eaddr(k,16,288,4608); c1=2*0.7978845608028654*1.4426950408889634
    for r,v in ((180,-c1*0.044715),(182,-c1),(184,1.0)): k.e(f'v_mov_b32 v{r}, {fb(v)}',f'v_mov_b32 v{r+1}, {fb(v)}')
    for i in range(144): k.e(f'v_mov_b32 v{24+i}, 0')
    k.wait(lambda t:t==0); k.e('s_barrier'); k.put(frd(0,NS)); k.put(frd(1,NS))
    for s in range(18):
        ld=[]
        if s+D<18:
            ld=wl(s+D)
            if s+D<9: r=rload(s+D,9,1024,s+D); ld=[ld[0],r[0],ld[1],r[1],ld[2],r[2],ld[3],r[3],ld[4]]
        gstage(k,s,18,NS,ld,24 if s<9 else 96,s%9)
        if s==8:
            gelu_all(k,24)
            for tt in range(2):
                for q in range(18):
                    a=24+8*(q//2)+4*tt+2*(q%2); A=f'v[{a}:{a+1}]'; s1=f'v[{168+4*tt}:{169+4*tt}]'; s2=f'v[{170+4*tt}:{171+4*tt}]'
                    if q==0: k.e(f'v_mov_b32 v{168+4*tt}, v{a}',f'v_mov_b32 v{169+4*tt}, v{a+1}',f'v_pk_mul_f32 {s2}, {A}, {A}')
                    else: k.e(f'v_pk_add_f32 {s1}, {s1}, {A}',f'v_pk_fma_f32 {s2}, {A}, {A}, {s2}')
            k.e('v_add_f32 v168, v168, v169','v_add_f32 v170, v170, v171','v_add_f32 v172, v172, v173','v_add_f32 v174, v174, v175',
                'v_permlane16_swap_b32 v168, v172','v_permlane16_swap_b32 v170, v174','v_add_f32 v168, v168, v172','v_add_f32 v170, v170, v174',
                'v_permlane32_swap_b32 v168, v170','v_add_f32 v168, v168, v170','v_min_u32 v186, -2, v168')
            k.vmop('buffer_store_dword v186, v21, s[20:23], s38 offen sc0 sc1','st')
    def poll():
        for n in range(16): k.e(f'buffer_load_dword v{188+n}, v21, s[20:23], s40 offen offset:{256*n} sc0 sc1')
    poll(); gelu_all(k,96)
    for j in range(9):
        t=168+4*(j%3)
        for q in range(4): k.e(f'v_cvt_pk_bf16_f32 v{t+q}, v{96+8*j+2*q}, v{97+8*j+2*q}')
        k.e(f'buffer_store_dwordx4 v[{t}:{t+3}], v20, s[16:19], s37 offen offset:{1024*(j%4)}')
        if j%4==3: k.e('s_add_u32 s37, s37, 4096')
    k.e('s_waitcnt vmcnt(9)','k3_chk:','v_max3_u32 v187, v188, v189, v190')
    for n in range(3,15,2): k.e(f'v_max3_u32 v187, v187, v{188+n}, v{189+n}')
    k.e('v_max_u32 v187, v187, v203','v_cmp_eq_u32 vcc, -1, v187','s_cbranch_vccz k3_go','s_sleep 2'); poll(); k.e('s_waitcnt vmcnt(0)','s_branch k3_chk','k3_go:')
    for n in range(1,16): k.e(f'v_add_f32 v188, v188, v{188+n}')
    k.e(f'v_mul_f32 v188, {fb(1/2304)}, v188','v_mov_b32 v189, v188','v_permlane32_swap_b32 v188, v189','v_fma_f32 v189, -v188, v188, v189','v_max_f32 v189, 0, v189',
        f'v_add_f32 v189, {fb(1e-5)}, v189','v_rsq_f32 v190, v189','v_mul_f32 v192, v188, v190','v_sub_f32 v192, 0, v192','v_mov_b32 v191, v190','v_mov_b32 v193, v192',
        'v_permlane16_swap_b32 v190, v191','v_permlane16_swap_b32 v192, v193')
    for i in range(72):
        tt=(i//4)%2; k.e(f'v_fma_f32 v{24+i}, v{24+i}, v{190+tt}, v{192+tt}')
    packswap(k,24,96,fstore(k,12,'s35',16)); end(k); return finish(k,204,36+144)
```

```python
from fw import *
SC=128**-0.5*1.4426950408889634
import struct
def fb(x): return '0x%08x'%struct.unpack('<I',struct.pack('<f',x))[0]
def unpack(k,dst,src,n=4):
    for i in range(n): k.e(f'v_lshlrev_b32 v{dst+2*i}, 16, v{src+i}',f'v_and_b32 v{dst+2*i+1}, 0xffff0000, v{src+i}')
def pack(k,dst,src,n=4):
    for i in range(n): k.e(f'v_cvt_pk_bf16_f32 v{dst+i}, v{src+2*i}, v{src+2*i+1}')
def rowaddr(k):
    k.e('v_and_b32 v1, 7, v0','v_lshrrev_b32 v2, 3, v0','v_lshrrev_b32 v5, 6, v0','s_lshl_b32 s3, s2, 3',
        'v_add_u32 v6, s3, v1','v_readfirstlane_b32 s24, v5','v_mul_u32_u24 v3, 1152, v6','v_lshl_add_u32 v3, v2, 4, v3',
        's_lshr_b32 s25, s2, 1','s_mul_i32 s25, s25, 18432','v_and_b32 v6, 15, v6','v_lshlrev_b32 v6, 4, v6',
        'v_lshl_add_u32 v4, v2, 8, v6','v_add_u32 v4, s25, v4','v_lshlrev_b32 v5, 5, v2')
def lnstats(k,x):
    k.e(f'v_add_f32 v6, v{x}, v{x+1}',f'v_mul_f32 v7, v{x}, v{x}',f'v_fmac_f32 v7, v{x+1}, v{x+1}')
    for i in range(2,8): k.e(f'v_add_f32 v6, v6, v{x+i}',f'v_fmac_f32 v7, v{x+i}, v{x+i}')
    k.e('v_add_f32_dpp v6, v6, v6 row_ror:8 row_mask:0xf bank_mask:0xf','v_add_f32_dpp v7, v7, v7 row_ror:8 row_mask:0xf bank_mask:0xf',
        'v_permlane16_swap_b32 v6, v7','v_add_f32 v6, v6, v7','v_mov_b32 v7, v6','v_permlane32_swap_b32 v6, v7','v_add_f32 v6, v6, v7',
        'v_and_b32 v8, 31, v0','v_lshlrev_b32 v8, 2, v8','s_lshl_b32 s26, s24, 7','v_add_u32 v8, s26, v8','ds_write_b32 v8, v6',
        'v_lshlrev_b32 v9, 2, v1','s_waitcnt lgkmcnt(0)','s_barrier')
    for w in range(9):
        if w<8: k.e(f'ds_read2_b32 v[{12+2*w}:{13+2*w}], v9 offset0:{32*w} offset1:{32*w+16}')
        else: k.e('v_add_u32 v9, 1024, v9','ds_read2_b32 v[28:29], v9 offset0:0 offset1:16')
    k.e('s_waitcnt lgkmcnt(0)')
    for w in range(1,9): k.e(f'v_add_f32 v12, v12, v{12+2*w}',f'v_add_f32 v13, v13, v{13+2*w}')
    k.e(f'v_mul_f32 v12, {fb(1/576)}, v12',f'v_mul_f32 v13, {fb(1/576)}, v13','v_fma_f32 v13, -v12, v12, v13','v_max_f32 v13, 0, v13',
        f'v_add_f32 v13, {fb(1e-5)}, v13','v_rsq_f32 v10, v13','v_mul_f32 v11, v12, v10','v_sub_f32 v11, 0, v11')
def k0():
    k=K('k0_kernel'); S=[(4,A_X,2359296),(8,'XN'),(12,W_MOD,3981312),(16,A_C,1152),(20,'MOD')]
    start(k,364,S); k.e('s_cmp_ge_u32 s2, 256','s_cbranch_scc1 k0_gemv')
    rowaddr(k); start2(k,S)
    k.e('buffer_load_dwordx4 v[32:35], v3, s[4:7], 0 offen','s_waitcnt vmcnt(0)')
    unpack(k,40,32); lnstats(k,40)
    for i in range(8): k.e(f'v_fma_f32 v{40+i}, v{40+i}, v10, v11')
    pack(k,32,40); k.e('buffer_store_dwordx4 v[32:35], v4, s[8:11], 0 offen','s_endpgm','k0_gemv:')
    k.e('s_sub_u32 s3, s2, 256','v_and_b32 v1, 3, v0','v_lshrrev_b32 v2, 2, v0','v_lshrrev_b32 v5, 6, v0','v_mul_u32_u24 v3, 6912, v2',
        'v_readfirstlane_b32 s24, v5','v_lshl_add_u32 v3, v1, 4, v3','v_lshlrev_b32 v4, 1, v2','s_lshl_b32 s25, s3, 6')
    start2(k,S)
    for i in range(4): k.e(f'buffer_load_ushort v{8+i}, v4, s[16:19], 0 offen offset:{288*i}')
    for i in range(4): k.e(f'buffer_load_dwordx4 v[{16+4*i}:{19+4*i}], v3, s[12:15], s25 offen',f's_add_u32 s25, s25, {144*6912}')
    k.e('s_waitcnt vmcnt(4)')
    for i in range(4):
        k.e(f'v_lshlrev_b32 v{8+i}, 16, v{8+i}',f'v_mul_f32 v12, {fb(-1.4426950408889634)}, v{8+i}','v_exp_f32 v12, v12','v_add_f32 v12, 1.0, v12',
            'v_rcp_f32 v12, v12',f'v_mul_f32 v12, v12, v{8+i}','v_cvt_pk_bf16_f32 v12, v12, v12',f'v_lshlrev_b32 v{8+i}, 16, v12')
    for i in range(4):
        k.e(f's_waitcnt vmcnt({3-i})'); unpack(k,32,16+4*i)
        for e in range(8): k.e(f'v_mul_f32 v{40+e}, v{8+i}, v{32+e}' if i==0 else f'v_fmac_f32 v{40+e}, v{8+i}, v{32+e}')
    for r in (4,8):
        for e in range(8): k.e(f'v_add_f32_dpp v{40+e}, v{40+e}, v{40+e} row_ror:{r} row_mask:0xf bank_mask:0xf')
    for e in range(4): k.e(f'v_permlane16_swap_b32 v{40+e}, v{44+e}')
    for e in range(4): k.e(f'v_add_f32 v{40+e}, v{40+e}, v{44+e}')
    for e in range(2): k.e(f'v_permlane32_swap_b32 v{40+e}, v{42+e}')
    for e in range(2): k.e(f'v_add_f32 v{40+e}, v{40+e}, v{42+e}')
    k.e('v_and_b32 v6, 16, v0','v_bfe_u32 v7, v0, 5, 1','v_lshl_add_u32 v6, v7, 3, v6','v_lshl_add_u32 v6, v1, 5, v6','s_lshl_b32 s26, s24, 7',
        'v_add_u32 v6, s26, v6','ds_write_b64 v6, v[40:41]','s_waitcnt lgkmcnt(0)','s_barrier','s_cmp_lg_u32 s24, 0','s_cbranch_scc1 k0_kernel_end',
        'v_and_b32 v6, 31, v0','v_lshlrev_b32 v6, 2, v6')
    for w in range(9): k.e(f'ds_read_b32 v{16+w}, v6 offset:{128*w}')
    k.e('s_mul_i32 s26, s3, 3641','s_lshr_b32 s26, s26, 16','s_lshl_b32 s27, s3, 7',
        's_cmp_eq_u32 s26, 1','s_cselect_b32 s28, 1.0, 0','s_cmp_eq_u32 s26, 4','s_cselect_b32 s28, 1.0, s28',
        's_cmp_lt_u32 s26, 2',f's_cselect_b32 s29, {fb(SC)}, 1.0','s_waitcnt lgkmcnt(0)')
    for w in range(1,9): k.e(f'v_add_f32 v16, v16, v{16+w}')
    k.e('v_cvt_pk_bf16_f32 v16, v16, v16','v_lshlrev_b32 v16, 16, v16','v_add_f32 v16, s28, v16','v_cvt_pk_bf16_f32 v16, v16, v16','v_lshlrev_b32 v16, 16, v16',
        'v_mul_f32 v16, s29, v16','buffer_store_dword v16, v6, s[20:23], s27 offen')
    end(k); return finish(k,64)
def ldmod(k,dst,seg):
    k.e(f's_mov_b32 s27, {seg*2304}',f'buffer_load_dwordx4 v[{dst}:{dst+3}], v5, s[20:23], s27 offen',f'buffer_load_dwordx4 v[{dst+4}:{dst+7}], v5, s[20:23], s27 offen offset:16')
def sumparts(k):
    for p in range(4): k.e(f's_mov_b32 s27, {p*2359296}',f'buffer_load_dwordx4 v[{64+4*p}:{67+4*p}], v4, s[16:19], s27 offen')
def addparts(k):
    unpack(k,80,64)
    for p in range(1,4):
        unpack(k,12,64+4*p)
        for e in range(8): k.e(f'v_add_f32 v{80+e}, v{80+e}, v{12+e}')
    unpack(k,40,32)
    for e in range(8): k.e(f'v_fmac_f32 v{40+e}, v{80+e}, v{48+e}')
    pack(k,32,40)
def k2b():
    k=K('k2b_kernel'); S=[(4,A_X,2359296),(8,'X1'),(12,'H2'),(16,'PART'),(20,'MOD'),(32,'STAT')]
    start(k,256,S); rowaddr(k); start2(k,S); sumparts(k)
    k.e('buffer_load_dwordx4 v[32:35], v3, s[4:7], 0 offen'); ldmod(k,48,2); ldmod(k,56,4); ldmod(k,88,3)
    k.e('v_lshlrev_b32 v6, 2, v0','v_mov_b32 v7, 0x40000000','v_cmp_gt_u32 vcc, 0x100, v0','v_cndmask_b32 v6, v7, v6, vcc','v_mov_b32 v7, -1',
        's_lshl_b32 s27, s2, 10','buffer_store_dword v7, v6, s[32:35], s27 offen','s_waitcnt vmcnt(5)')
    addparts(k); k.e('buffer_store_dwordx4 v[32:35], v4, s[8:11], 0 offen'); unpack(k,40,32); lnstats(k,40)
    k.e('s_waitcnt vmcnt(2)')
    for i in range(8): k.e(f'v_fma_f32 v{40+i}, v{40+i}, v10, v11',f'v_fma_f32 v{40+i}, v{40+i}, v{56+i}, v{88+i}')
    pack(k,36,40); k.e('buffer_store_dwordx4 v[36:39], v4, s[12:15], 0 offen')
    end(k); return finish(k,96)
def k5b():
    k=K('k5b_kernel'); S=[(4,D_OUT,2359296),(8,'X1'),(16,'PART'),(20,'MOD')]
    start(k,256,S); rowaddr(k); start2(k,S); sumparts(k)
    k.e('buffer_load_dwordx4 v[32:35], v4, s[8:11], 0 offen'); ldmod(k,48,5); k.e('s_waitcnt vmcnt(0)')
    addparts(k); k.e('buffer_store_dwordx4 v[32:35], v3, s[4:7], 0 offen')
    end(k); return finish(k,96)
```

```python
import sys
from fw import *
import krow,kgemm,katt
KS=[('k0',364,576,2048,krow.k0),('k1',256,256,139264,katt.k1),
    ('k2',256,256,147456,lambda:kgemm.ksplit('k2_kernel',A_WO,4718592,'O',4096)),('k2b',256,576,2048,krow.k2b),
    ('k3',256,256,147456,kgemm.k3),('k4',256,256,147456,kgemm.k4),
    ('k5',256,256,147456,lambda:kgemm.ksplit('k5_kernel',B_WOUT,2654208,'Y',2304)),('k5b',256,576,0,krow.k5b)]
hd=''.join(f'; @launch kernel={n}_kernel grid=({g},1,1) block=({b},1,1) lds={l}\n' for n,g,b,l,f in KS)
P=[f() for *_,f in KS]
out=hd+'.amdgcn_target "amdgcn-amd-amdhsa--gfx950"\n.text\n'+''.join(p[0] for p in P)+'.section .rodata,"a"\n'+''.join(p[1] for p in P)
open(sys.argv[1] if len(sys.argv)>1 else 'adaLN_cond__sliding_block_cached__mixer_gmlp__prompt.s','w').write(out)
for (n,*_),p in zip(KS,P): print(n,p[0].count('\n'),'nops',p[0].count('s_nop'))
```

```python
import re
class K:
    def __init__(s,name): s.name=name; s.L=[]; s.vm=[]
    def e(s,*t):
        for x in t:
            for y in x.split('\n'):
                y=y.strip()
                if y: s.L.append(y)
    def vmop(s,txt,tag): s.L.append(txt); s.vm.append(tag)
    def wait(s,pred,extra=''):
        idx=[i for i,t in enumerate(s.vm) if pred(t)]
        if not idx:
            if extra: s.L.append('s_waitcnt '+extra)
            return
        n=len(s.vm)-1-idx[-1]; s.vm=s.vm[idx[-1]+1:]
        s.L.append(('s_waitcnt vmcnt(%d) %s'%(min(n,63),extra)).strip())
    def put(s,f):
        if callable(f): f()
        elif isinstance(f,tuple): s.vmop(*f)
        elif isinstance(f,list):
            for x in f: s.put(x)
        else: s.e(f)
    def weave(s,mf,fill):
        n=len(mf); i=0
        for j,m in enumerate(mf):
            s.e(m)
            upto=((j+1)*len(fill)+n-1)//n
            while i<upto: s.put(fill[i]); i+=1
def regs(tok):
    tok=tok.strip().lstrip('-')
    if tok.startswith('abs('): tok=tok[4:-1]
    m=re.fullmatch(r'([vas])(\d+)',tok)
    if m: return {(m.group(1),int(m.group(2)))}
    m=re.fullmatch(r'([vas])\[(\d+):(\d+)\]',tok)
    if m: return {(m.group(1),i) for i in range(int(m.group(2)),int(m.group(3))+1)}
    if tok=='vcc': return {('s','vcc')}
    return set()
TRANS=('v_exp_f32','v_log_f32','v_rcp_f32','v_rsq_f32','v_sqrt_f32')
def parse(l):
    op,_,r=l.partition(' ')
    ops=[o.strip() for o in r.split(',')]
    ops=[o.split(' ')[0] for o in ops]
    R=[regs(o) for o in ops]; U=lambda x:set().union(*x) if x else set()
    d=dict(op=op,w=set(),r=set(),c=set(),cls='o')
    if op.startswith('v_mfma'): d.update(cls='m',w=R[0],r=R[1]|R[2],c=R[3],p=8 if '32x32' in op else 4)
    elif op.startswith('v_permlane'): d.update(cls='v',w=R[0]|R[1],r=R[0]|R[1])
    elif op.startswith('v_'):
        d.update(cls='v',w=R[0],r=U(R[1:]))
        if op.startswith('v_fmac') or 'dpp' in op: d['r']=d['r']|R[0]
    elif op.startswith('ds_read'): d.update(cls='x',w=R[0],r=U(R[1:]))
    elif op.startswith('ds_'): d.update(cls='x',r=U(R))
    elif op.startswith('buffer_load'):
        if ' lds' in l: d.update(cls='x',r=U(R),lds=1)
        else: d.update(cls='x',w=R[0],r=U(R[1:]))
    elif op.startswith('buffer_'): d.update(cls='x',r=U(R),st=R[0] if 'x4' in op else set())
    elif op.startswith('s_') and ops and ops[0]=='m0': d.update(m0=1)
    return d
def need(a,b):
    n=0
    if a['cls']=='m':
        big=a['p']==8
        if b['cls']=='m':
            if a['w']&b['r']: n=12 if big else 8
            elif a['w']&b['c'] and a['w']!=b['c']: n=10 if big else 6
            elif a['w']&b['w'] and a['w']!=b['c']: n=12 if big else 8
        elif b['cls'] in 'vx':
            if a['w']&(b['r']|b['w']): n=12 if big else 8
            elif b['cls']=='v' and a['c']&b['w']: n=7 if big else 3
    elif a['cls']=='v':
        vw={x for x in a['w'] if x[0]!='s'}; sw=a['w']-vw
        if b['cls']=='m' and vw&(b['r']|b['c']): n=2
        if b['cls']=='v':
            if vw&b['r']:
                if b['op'].startswith('v_permlane') or 'dpp' in b['op']: n=2
                elif b['op'].startswith('v_read'): n=1
                elif a['op'] in TRANS: n=max(n,1)
            if sw&b['r']: n=max(n,2)
        if b['cls']=='x' and sw&b['r']: n=5
        if b['op'].startswith('s_cbranch_vcc') and sw: n=max(n,1)
    elif a.get('st') and b['cls'] in 'vm' and a['st']&b['w']: n=2
    elif a.get('m0') and b.get('lds'): n=1
    return n
def hazard(L):
    out=[]; hist=[]
    for l in L:
        if l.endswith(':') or l.startswith(';'): out.append(l); continue
        b=parse(l); dist=0; pad=0
        for a,ws in reversed(hist):
            pad=max(pad,need(a,b)-dist); dist+=ws
            if dist>=13: break
        if pad>0: out.append('s_nop %d'%(pad-1)); hist.append((parse('s_nop 0'),pad))
        ws=int(l.split()[1])+1 if l.startswith('s_nop') else 1
        out.append(l); hist.append((b,ws)); hist=hist[-16:]
    return out
def finish(k,vg,ag=0):
    body='\n'.join(hazard(k.L))
    ao=(vg+3)//4*4
    txt=f""".globl {k.name}
.p2align 8
.type {k.name},@function
{k.name}:
{body}
"""
    kd=f""".p2align 6
.amdhsa_kernel {k.name}
  .amdhsa_next_free_vgpr {ao+ag}
  .amdhsa_next_free_sgpr 96
  .amdhsa_accum_offset {ao}
  .amdhsa_group_segment_fixed_size 0
  .amdhsa_kernarg_size 120
  .amdhsa_user_sgpr_count 2
  .amdhsa_user_sgpr_kernarg_segment_ptr 1
  .amdhsa_system_sgpr_workgroup_id_x 1
.end_amdhsa_kernel
"""
    return txt,kd
def looped(k,stages,U,lab,sc):
    n=len(stages); best=(0,0)
    for a in range(n):
        r=1
        while a+(r+1)*U<=n and stages[a+r*U:a+(r+1)*U]==stages[a:a+U]: r+=1
        if r>best[1]: best=(a,r)
    a,r=best
    if r<2:
        for s in stages: k.L+=s
        return
    for s in stages[:a]: k.L+=s
    k.e(f's_mov_b32 {sc}, {r}',f'{lab}:')
    for s in stages[a:a+U]: k.L+=s
    k.e(f's_sub_u32 {sc}, {sc}, 1',f's_cmp_lg_u32 {sc}, 0',f's_cbranch_scc1 {lab}')
    for s in stages[a+r*U:]: k.L+=s
A_X,A_K,A_V,A_WQ,A_WO,B_X,B_WIN,B_WSP,B_BSP,B_WOUT,A_C,W_MOD,D_OUT,D_DBG,D_WS=range(15)
WS=dict(MOD=(0,0x4000),XN=(0x10000,2359296),X1=(0x300000,2359296),H2=(0x600000,2359296),STAT=(0x900000,262144),
        O=(0x1000000,16777216),PART=(0x2000000,9437184),Z1=(0x3000000,9437184),Z2=(0x4000000,9437184),Y=(0x5000000,9437184),WSP=(0x6000000,8388608))
def start(k,grid,srds):
    k.e(f's_cmp_ge_u32 s2, {grid}',f's_cbranch_scc1 {k.name}_end'); stamp(k)
    for r,x,*n in srds: k.e(f's_load_dwordx2 s[{r}:{r+1}], s[0:1], {8*(D_WS if isinstance(x,str) else x)}')
    for r,x,*n in srds: k.e(f's_mov_b32 s{r+2}, {WS[x][1] if isinstance(x,str) else n[0]}',f's_mov_b32 s{r+3}, 0x20000')
def start2(k,srds):
    k.e('s_waitcnt lgkmcnt(0)')
    for r,x,*n in srds:
        if isinstance(x,str) and WS[x][0]: k.e(f's_add_u32 s{r}, s{r}, {WS[x][0]}',f's_addc_u32 s{r+1}, s{r+1}, 0')
import os
STAMP=os.environ.get('STAMP')
KIDX={}
def stamp(k):
    if not STAMP: return
    n=getattr(k,'ns',0); k.ns=n+1
    if n==0: k.e('s_memrealtime s[56:57]','s_load_dwordx2 s[52:53], s[0:1], 112')
    k.e(f's_memtime s[{60+2*n}:{61+2*n}]','s_waitcnt lgkmcnt(0)')
def end(k):
    if STAMP:
        k.e('s_waitcnt vmcnt(0)'); stamp(k); i=KIDX.setdefault(k.name,len(KIDX))
        k.e('s_memrealtime s[58:59]','s_waitcnt lgkmcnt(0)','s_cmp_lg_u32 s24, 0',f's_cbranch_scc1 {k.name}_end','s_mov_b32 s54, 0x8000000','s_mov_b32 s55, 0x20000',
            's_lshl_b32 s3, s2, 6',f's_add_u32 s3, s3, {0x7000000+i*65536}','v_mov_b32 v0, 0','s_sub_u32 s59, s58, s56','v_mov_b32 v1, s59','buffer_store_dword v1, v0, s[52:55], s3 offen',
            'v_mov_b32 v1, s56','buffer_store_dword v1, v0, s[52:55], s3 offen offset:56','v_mov_b32 v1, s58','buffer_store_dword v1, v0, s[52:55], s3 offen offset:60')
        for n in range(1,k.ns): k.e(f's_sub_u32 s59, s{60+2*n}, s{58+2*n}','v_mov_b32 v1, s59',f'buffer_store_dword v1, v0, s[52:55], s3 offen offset:{4*n}')
    k.e(f'{k.name}_end:','s_endpgm')
```

```python
from fw import *
from krow import fb
TM=os.environ.get('TM','q'); TAU=72.0; BIAS=48.0
def mix(*ls):
    out=[]; n=max(len(l) for l in ls)
    for i in range(n):
        for l in ls:
            out+=l[(i*len(l))//n:((i+1)*len(l))//n]
    return out
def k1():
    k=K('k1_kernel'); S=[(4,A_WQ,4718592),(8,'XN'),(12,'O'),(16,A_K,8388608),(20,A_V,8388608),(40,'MOD'),(48,B_WSP,8388608),(76,'WSP'),(80,A_WO,4718592),(84,B_WIN,5308416),(88,B_WOUT,2654208)]
    start(k,256,S)
    k.e('v_lshrrev_b32 v2, 6, v0','v_and_b32 v1, 63, v0','v_readfirstlane_b32 s24, v2',
        's_and_b32 s26, s2, 3','s_lshl_b32 s26, s26, 2','s_bfe_u32 s3, s2, 0x20003','s_add_u32 s26, s26, s3',
        's_bfe_u32 s25, s2, 0x10002','s_lshl_b32 s25, s25, 3','s_lshr_b32 s3, s2, 5','s_add_u32 s25, s25, s3',
        's_lshl_b32 s34, s25, 2','s_add_u32 s34, s34, s24','s_lshl_b32 s28, s26, 9','s_mul_i32 s29, s34, 36864',
        's_lshl_b32 s36, s26, 19','s_add_u32 s36, s36, 393216','s_add_u32 s37, s36, 8192','s_mov_b32 s38, s36',
        's_lshl_b32 s35, s34, 18','s_lshl_b32 s3, s26, 13','s_add_u32 s35, s35, s3','s_lshl_b32 s30, s24, 12','s_lshl_b32 s33, s24, 11',
        'v_lshrrev_b32 v3, 5, v1','v_and_b32 v4, 31, v1','v_lshrrev_b32 v5, 4, v1','v_and_b32 v6, 15, v1','v_lshlrev_b32 v7, 3, v2')
    for i in range(4):
        k.e(f'v_add_u32 v8, {2*i}, v3','v_and_b32 v9, 3, v8','v_lshlrev_b32 v9, 2, v9','v_xor_b32 v9, v9, v4','v_add_u32 v8, v8, v7','v_lshlrev_b32 v8, 13, v8',f'v_lshl_add_u32 v{240+i}, v9, 4, v8')
    for i in range(2):
        k.e(f'v_add3_u32 v8, v7, v5, {4*i}','v_and_b32 v9, 15, v8','v_xor_b32 v9, v9, v6','v_lshlrev_b32 v8, 8, v8',f'v_lshl_add_u32 v{244+i}, v9, 4, v8',
            'v_lshlrev_b32 v9, 2, v5','v_xor_b32 v9, v9, v6',f'v_lshl_add_u32 v{246+i}, v9, 4, v8')
    k.e('v_and_b32 v8, 1, v5','v_lshlrev_b32 v9, 4, v6','v_lshl_add_u32 v9, v3, 8, v9','v_mul_u32_u24 v10, 18432, v8','v_add_u32 v248, v9, v10','v_lshl_add_u32 v252, v8, 17, v9',
        'v_lshlrev_b32 v249, 5, v3','v_add_u32 v249, 0x20000, v249','v_lshlrev_b32 v253, 4, v0')
    start2(k,S)
    def wl(s): return [[f's_add_u32 m0, s30, {16384*((s+6)%8)+1024*i}',(f'buffer_load_dwordx4 v{240+i}, s[4:7], s28 offen lds',s)]+(['s_add_u32 s28, s28, 262144'] if i==3 else []) for i in range(4)]
    def xl(s): return [[(f'buffer_load_dwordx4 v[{128+8*(s%8)+4*x}:{131+8*(s%8)+4*x}], v248, s[8:11], s29 offen offset:{512*x}',s)]+(['s_add_u32 s29, s29, 1024'] if x else []) for x in range(2)]
    def al(n):
        f=[]
        if n<15: f+=[[f's_add_u32 m0, s33, {16384*(n%4)+1024*i}',(f'buffer_load_dwordx4 v{244+i}, s[16:19], {"s36" if n<0 else "s37"} offen lds',('a',n))]+(['s_add_u32 s37, s37, 8192'] if i and n>=0 else []) for i in range(2)]
        if 0<=n<16: f+=[[f's_add_u32 m0, s33, {16384*(n%4)+8192+1024*i}',(f'buffer_load_dwordx4 v{246+i}, s[20:23], s38 offen lds',('a',n))]+(['s_add_u32 s38, s38, 8192'] if i else []) for i in range(2)]
        return f
    k.e('s_lshl_b32 s3, s24, 10','s_movk_i32 s39, 0x1000')
    for i in range(2): k.put([f's_add_u32 m0, s3, {131072+4096*i}',(f'buffer_load_dwordx4 v253, s[40:43], {"s39" if i else "0"} offen lds',0)])
    for s in range(8): k.put(xl(s)); k.put(wl(s))
    k.e('s_lshl_b32 s3, s2, 2','s_add_u32 s3, s3, s24','s_lshr_b32 s47, s3, 3','s_lshl_b32 s47, s47, 16','s_and_b32 s92, s3, 7','s_lshl_b32 s92, s92, 9','s_add_u32 s47, s47, s92','s_lshl_b32 s92, s3, 13',
        'v_lshlrev_b32 v253, 4, v1','v_lshlrev_b32 v254, 12, v6','v_lshl_add_u32 v254, v5, 4, v254','v_lshlrev_b32 v255, 7, v1',
        'v_mov_b32 v8, 0x40000000','v_cmp_gt_u32 vcc, 9, v1','v_cndmask_b32 v255, v8, v255, vcc','s_mul_i32 s93, s3, 1152')
    def sideq(s):
        f=[]
        if s<8: f+=[(f'buffer_load_dwordx4 a[{192+4*s}:{195+4*s}], v254, s[48:51], s47 offen offset:{64*s}','w')]
        return f+(touch(s) if TM=='q' else [])
    def touch(s):
        f=[]
        if s<12:
            r,j=(80,s) if s<4 else (84,s-4) if s<9 else (88,s-9)
            f+=[[f's_add_u32 s3, s93, {j*1179648}',(f'buffer_load_dword a224, v255, s[{r}:{r+3}], s3 offen','p')]]
        return f
    k.e('v_bfe_u32 v8, v1, 2, 2','v_and_b32 v9, 1, v1','v_bfe_u32 v10, v1, 1, 1','v_lshl_add_u32 v9, v9, 1, v10','v_lshlrev_b32 v9, 3, v9','v_and_b32 v10, 1, v5','v_lshl_add_u32 v9, v10, 5, v9',
        'v_lshl_add_u32 v10, v3, 3, v8','v_lshlrev_b32 v10, 9, v10','v_add_u32 v10, 0x10000, v10','v_lshl_add_u32 v11, v3, 2, v8','v_lshlrev_b32 v11, 8, v11')
    for T in range(4): k.e(f'v_xor_b32 v12, {T}, v8','v_lshl_add_u32 v12, v12, 6, v9',f'v_add_u32 v{224+T}, v12, v10',f'v_add_u32 v{236+T}, v12, v11')
    k.e('v_xor_b32 v8, v3, v6','v_lshlrev_b32 v8, 4, v8','v_lshl_add_u32 v228, v4, 8, v8')
    for ks in range(1,8): k.e(f'v_xor_b32 v{228+ks}, {32*ks}, v228')
    for i in range(128): k.e(f'v_accvgpr_write_b32 a{i}, 0')
    k.e('v_mov_b32 v250, 0','v_mov_b32 v251, 0',f's_mov_b32 s44, {fb(TAU)}',f's_mov_b32 s45, {fb(BIAS)}')
    def wrd(i):
        s,ks=divmod(i,2); sl=(s+6)%8
        f=[f'ds_read_b64_tr_b16 a[{128+32*(i%2)+4*T+2*h}:{129+32*(i%2)+4*T+2*h}], v{224+T%4} offset:{16384*(sl%4)+8192*ks+2048*h+256*(T//4)}' for T in range(8) for h in range(2)]
        if ks==0 and sl%4==0: f[0]=[f'v_xor_b32 v{224+T}, 0x10000, v{224+T}' for T in range(4)]+[f[0]]
        return f
    def asr(i): return [f'ds_read_b128 v[{200+4*x}:{203+4*x}], v249 offset:{64*i+16*(x%2)+(2304 if x<2 else 0)}' for x in range(4)]
    def unp(i):
        x=128+8*((i//2)%8)+4*(i%2)
        return [f'v_and_b32 v{216+e}, 0xffff0000, v{x+e//2}' if e&1 else f'v_lshlrev_b32 v{216+e}, 16, v{x+e//2}' for e in range(8)]
    fm=[f'v_fma_f32 v{216+e}, v{216+e}, v{200+e}, v{208+e}' for e in range(8)]
    def cv(i): return [f'v_cvt_pk_bf16_f32 v{192+4*(i%2)+e}, v{216+2*e}, v{217+2*e}' for e in range(4)]
    stamp(k); k.wait(lambda t:t==0); k.e('s_barrier'); stamp(k); k.put(asr(0)); k.put(wrd(0)); k.put(unp(0)); k.e('s_waitcnt lgkmcnt(0)'); k.put(fm); k.put(asr(1)); k.put(cv(0))
    pend=[]
    for i in range(36):
        s,ks=divmod(i,2)
        if ks==1 and s<17:
            k.wait(lambda t:t==s+1,'lgkmcnt(4)'); k.e('s_barrier')
            pend=mix(wl(s+8),xl(s+8)) if s<10 else al({10:0,11:1,12:2,13:-1}[s]) if s<14 else []
            pend=pend+sideq(s)
            ld=pend[:(len(pend)+1)//2]; pend=pend[len(ld):]
        else: k.e('s_waitcnt lgkmcnt(%d)'%(4 if i<35 else 0)); ld=pend; pend=[]
        mf=[f'v_mfma_f32_32x32x16_bf16 v[{16*T}:{16*T+15}], a[{128+32*(i%2)+4*T}:{131+32*(i%2)+4*T}], v[{192+4*(i%2)}:{195+4*(i%2)}], '+('0' if i==0 else f'v[{16*T}:{16*T+15}]') for T in range(8)]
        f=[]
        if i<35:
            r=wrd(i+1); f=mix(r[:8],unp(i+1))+['s_waitcnt lgkmcnt(8)']+mix(fm,r[8:])+(asr(i+2) if i<34 else [])+mix(cv(i+1),ld)
        if os.environ.get('NOMOD') and i<35: f=mix(r,ld)+['s_waitcnt lgkmcnt(4)']
        k.weave(mf,f)
    def krd(blk): return [f'ds_read_b128 a[{128+4*ks}:{131+4*ks}], v{228+ks} offset:{16384*((blk-1)%4)}' for ks in range(8)]
    def vrd(blk): return [[f'ds_read_b64_tr_b16 a[{160+4*m+2*h}:{161+4*m+2*h}], v{236+m%4} offset:{16384*(blk%4)+8192+4096*(m//4)+2048*h}' for h in range(2)] for m in range(8)]
    stamp(k); k.wait(lambda t:t==('a',-1)); k.e('s_barrier','s_nop 1'); k.put(krd(0))
    for i in range(64): k.e(f'v_cvt_pk_bf16_f32 v{i}, v{2*i}, v{2*i+1}')
    def QK(h,first): return [f'v_mfma_f32_32x32x16_bf16 v[{64+16*h}:{79+16*h}], a[{128+4*ks}:{131+4*ks}], v[{32*h+4*ks}:{32*h+4*ks+3}], '+(f'v[{64+16*h}:{79+16*h}]' if ks else '0' if first else f'v[{112+16*h}:{127+16*h}]') for ks in range(8)]
    def PV(h): return [f'v_mfma_f32_32x32x16_bf16 a[{64*h+16*(m%4)}:{64*h+16*(m%4)+15}], a[{160+4*m}:{163+4*m}], v[{96+8*h+4*(m//4)}:{99+8*h+4*(m//4)}], a[{64*h+16*(m%4)}:{64*h+16*(m%4)+15}]' for m in range(8)]
    def SM(h,x):
        b=64+16*h+8*x; f=[f'v_exp_f32 v{b}, v{b}']
        for i in range(8):
            if i<7: f.append(f'v_exp_f32 v{b+i+1}, v{b+i+1}')
            elif True: f.append(f'v_cvt_pk_bf16_f32 v{96+8*h+4*x+2}, v{b+4}, v{b+5}')
            f.append(f'v_add_f32 v{250+h}, v{250+h}, v{b+i}')
            if i in (1,3,7): f.append(f'v_cvt_pk_bf16_f32 v{96+8*h+4*x+i//2}, v{b+i-1}, v{b+i}')
        return f
    def MX(h):
        b=64+16*h
        return [f'v_max3_f32 v144, v{b}, v{b+1}, v{b+2}']+[f'v_max3_f32 v144, v144, v{b+i}, v{b+i+1}' for i in range(3,15,2)]+[f'v_max_f32 v144, v144, v{b+15}']
    def CK(h): return MX(h)+['v_cmp_lt_f32 vcc, s44, v144','s_mov_b32 s46, RET']
    def full(): k.e('v_mov_b32 v145, v144','v_permlane32_swap_b32 v144, v145','v_max_f32 v144, v144, v145','v_add_f32 v144, s45, v144')
    def init(h):
        k.put(MX(h)); full()
        for i in range(16): k.e(f'v_sub_f32 v{64+16*h+i}, v{64+16*h+i}, v144',f'v_sub_f32 v{112+16*h+i}, 0, v144')
    def lag(n,l): return [[] for _ in range(n)]+l
    def grp(mf,fill,lagged=None):
        if not mf: k.put(fill); k.put(lagged or []); return
        F=[fill[(j*len(fill))//8:((j+1)*len(fill))//8]+([lagged[j]] if lagged else []) for j in range(8)]
        k.weave(mf,F)
    def side(b): return [[(f'buffer_store_dwordx4 a[{192+16*(b-12)+4*x}:{195+16*(b-12)+4*x}], v253, s[76:79], s92 offen offset:{1024*x}','ws')] for x in range(4)]+['s_add_u32 s92, s92, 4096'] if b in (12,13) else touch(b+1) if TM=='a' else []
    st=[]; save=k.L; pend=[]
    for b in range(-1,16):
        k.L=[]
        k.e('s_waitcnt lgkmcnt(%d)'%(0 if b<0 else 8))
        grp(QK(0,b<0) if b<15 else [], mix(sum(vrd(b)[4:],[]),SM(1,0)[:12])+SM(1,0)[12:] if b>=0 else [])
        if b<0: init(0)
        else:
            k.e('s_waitcnt lgkmcnt(0)'); grp(PV(0),SM(1,1)[:8]+mix(SM(1,1)[8:],pend)+(CK(0) if b<15 else [])); pend=[]
            if b<15: k.e('s_cbranch_vccnz k1_fix0','k1_rRET:')
        if b<15:
            k.wait(lambda t:t==('a',b+1)); k.e('s_barrier'); pend=al(b+4)
            grp(QK(1,b<0),mix(SM(0,0),pend[:2]+side(b)),krd(b+2) if b<14 else None); pend=pend[2:]
        if b<0: k.put(vrd(0)[:4]); k.put(SM(0,1)); init(1)
        else:
            grp(PV(1),SM(0,1)+CK(1) if b<15 else [],lag(4,vrd(b+1)[:4]) if b<15 else None)
            if b<15: k.e('s_cbranch_vccnz k1_fix1','k1_rRET:')
        st.append(k.L)
    k.L=[]; looped(k,st,4,'k1_lp','s31'); n=0; sites=[[],[]]
    for l in k.L:
        if l.startswith('s_cbranch_vccnz'): sites[int(l[-1])].append(n)
        save.append(l.replace('RET',str(n)))
        if l.endswith('RET:'): n+=1
    k.L=save; stamp(k)
    for h in range(2):
        k.e(f'v_mov_b32 v145, v{250+h}',f'v_permlane32_swap_b32 v{250+h}, v145',f'v_add_f32 v145, v145, v{250+h}','v_rcp_f32 v145, v145')
        for m in range(8):
            t=64+8*(m%2); p=80+4*(m%4)
            for e in range(8): k.e(f'v_accvgpr_read_b32 v{t+e}, a{64*h+8*m+e}')
            for e in range(8): k.e(f'v_mul_f32 v{t+e}, v{t+e}, v145')
            for e in range(4): k.e(f'v_cvt_pk_bf16_f32 v{p+e}, v{t+2*e}, v{t+2*e+1}')
            k.e(f'buffer_store_dwordx4 v[{p}:{p+3}], v252, s[12:15], s35 offen offset:{512*m}')
        k.e('s_add_u32 s35, s35, 4096')
    end(k)
    for h in range(2):
        k.e(f'k1_fix{h}:','s_nop 7'); full(); k.e('v_max_f32 v144, 0, v144','v_exp_f32 v145, -v144')
        for i in range(16): k.e(f'v_sub_f32 v{64+16*h+i}, v{64+16*h+i}, v144',f'v_sub_f32 v{112+16*h+i}, v{112+16*h+i}, v144')
        k.e(f'v_mul_f32 v{250+h}, v{250+h}, v145')
        for i in range(64): k.e(f'v_accvgpr_read_b32 v146, a{64*h+i}','v_mul_f32 v146, v146, v145',f'v_accvgpr_write_b32 a{64*h+i}, v146')
        for n in sites[h][:-1]: k.e(f's_cmp_eq_u32 s46, {n}',f's_cbranch_scc1 k1_r{n}')
        k.e('s_nop 1',f's_branch k1_r{sites[h][-1]}')
    return finish(k,256,228)
```

```python
from fw import *
from krow import fb
FR=0; RB=36
def gprolog(k,SW,Kr):
    k.e('v_lshrrev_b32 v12, 6, v0','v_and_b32 v1, 63, v0','v_readfirstlane_b32 s24, v12','s_mov_b32 s33, 3641','v_lshlrev_b32 v7, 4, v1',f'v_add_u32 v8, {Kr*32}, v7','s_mul_i32 s30, s24, 9216')
    for i in range(9):
        if SW==288: k.e(f'v_add_u32 v{204+i}, {4096*(i//4)}, v7'); continue
        k.e(f'v_add_u32 v15, {64*i}, v1','v_mul_lo_u32 v16, v15, s33','v_lshrrev_b32 v16, 16, v16','v_mul_u32_u24 v17, 18, v16','v_sub_u32 v15, v15, v17',
            'v_and_b32 v17, 0x13, v16','v_bfe_u32 v18, v16, 2, 1','v_lshl_add_u32 v17, v18, 3, v17','v_bfe_u32 v18, v16, 3, 1','v_lshl_add_u32 v17, v18, 2, v17',
            f'v_mul_u32_u24 v17, {SW}, v17',f'v_lshl_add_u32 v17, v15, 4, v17',f'v_subrev_u32 v{204+i}, {1024*(i%4)}, v17')
def gprolog2(k):
    k.e('v_lshrrev_b32 v12, 4, v1','v_and_b32 v13, 15, v1','v_lshrrev_b32 v14, 5, v1','v_lshlrev_b32 v14, 4, v14','v_bfe_u32 v15, v1, 2, 3','v_add_u32 v14, v14, v15','v_mul_u32_u24 v14, 288, v14',
        'v_and_b32 v15, 3, v1','v_lshl_add_u32 v2, v15, 3, v14','v_add_u32 v3, 36864, v2','v_add_u32 v4, 36864, v3','v_add_u32 v5, 36864, v4')
def wload(S,adv,fl=''):
    f=[]
    for i in range(9):
        if i%4==0: f.append(f's_add_u32 m0, s30, {36864*(S%4)+1024*i}')
        f.append((f'buffer_load_dwordx4 v{204+i}, s[4:7], s28 offen offset:{1024*(i%4)} lds'+fl,S))
    return f+[f's_add_u32 s28, s28, {adv}']
def rload(S,RR,nks,fl=''):
    f=[]
    for i in range(4*S,min(4*S+4,nks)):
        for tt in range(2):
            r=RB+8*(i%RR)+4*tt
            f.append((f'buffer_load_dwordx4 a[{r}:{r+3}], v{7+tt}, s[8:11], s29 offen offset:{1024*(i%4)}'+fl,S))
    return f+['s_add_u32 s29, s29, 4096'] if f else f
def frd(G):
    i,jb=divmod(G,3); S,ks=divmod(i,4); f=[]
    for jj in range(3):
        for h in range(2):
            r=FR+12*jb+4*jj+2*h
            f.append(f'ds_read_b64_tr_b16 a[{r}:{r+1}], v{2+S%4} offset:{9216*ks+2304*h+32*(3*jb+jj)}')
    return f
def mix(*ls):
    out=[]; n=max(len(l) for l in ls)
    for i in range(n):
        for l in ls: out+=l[(i*len(l))//n:((i+1)*len(l))//n]
    return out
def gmain(k,nks,adv,RR,nr,accf,pre=None,hook=None):
    nS=(nks+3)//4
    def lds(S): return mix(wload(S,adv(S)),rload(S,RR,nr)) if S<nS else []
    k.put(lds(0)); gprolog2(k); k.put(lds(1))
    if pre: pre()
    stamp(k); k.wait(lambda t:t==0); k.e('s_barrier'); stamp(k); k.put(frd(0)); k.put(frd(1))
    st=[]; save=k.L
    for S in range(nS):
        k.L=[]; ld=lds(S+2); n=0
        for g in range(12):
            G=12*S+g; i,jb=divmod(G,3)
            if i>=nks: break
            if hook and jb==0: hook(i)
            if g==10 and S+1<nS: k.wait(lambda t:t==S+1,'lgkmcnt(6)'); k.e('s_barrier')
            else: k.e('s_waitcnt lgkmcnt(%d)'%(0 if G+1>=3*nks else 6))
            rd=frd(G+2) if G+2<3*nks else [[]]*6
            for m in range(6):
                jj,tt=divmod(m,2); acc,first=accf(i)
                a=acc+8*(3*jb+jj)+4*tt; w=FR+12*jb+4*jj; r=RB+8*(i%RR)+4*tt
                k.e(f'v_mfma_f32_16x16x32_bf16 v[{a}:{a+3}], a[{w}:{w+3}], a[{r}:{r+3}], '+('0' if first else f'v[{a}:{a+3}]'))
                k.put(rd[m])
                if g<10 and m<5:
                    n+=1; k.put(ld[((n-1)*len(ld))//50:(n*len(ld))//50])
        st.append(k.L)
    k.L=save; looped(k,st,4,k.name+'_lp','s31'); stamp(k)
def packswap(k,acc,tmp,store):
    n=0
    for j in (0,2,4,6,8):
        for tt in ((0,1) if j<8 else (0,)):
            a=acc+8*j+4*tt; b=a+(8 if j<8 else 4); t=tmp+4*(n%3); n+=1
            k.e(f'v_cvt_pk_bf16_f32 v{t}, v{a}, v{a+1}',f'v_cvt_pk_bf16_f32 v{t+1}, v{a+2}, v{a+3}',
                f'v_cvt_pk_bf16_f32 v{t+2}, v{b}, v{b+1}',f'v_cvt_pk_bf16_f32 v{t+3}, v{b+2}, v{b+3}',
                f'v_permlane16_swap_b32 v{t}, v{t+2}',f'v_permlane16_swap_b32 v{t+1}, v{t+3}')
            store(t,j,tt)
def eaddr(k,ps,ts,tstride,tr=13):
    k.e('v_and_b32 v17, 1, v12','v_lshrrev_b32 v18, 1, v12','v_lshl_add_u32 v14, v17, 1, v18',f'v_mul_u32_u24 v14, {ps}, v14',f'v_mul_u32_u24 v19, {ts}, v{tr}',
        'v_add_u32 v14, v14, v19',f'v_add_u32 v15, {tstride}, v14','v_add_u32 v18, 16, v18',f'v_mul_u32_u24 v18, {ps}, v18',f'v_mul_u32_u24 v17, {tstride}, v17','v_add3_u32 v16, v17, v18, v19')
def fstore(k,srd,so,ps):
    return lambda t,j,tt: k.e(f'buffer_store_dwordx4 v[{t}:{t+3}], v{14+tt if j<8 else 16}, s[{srd}:{srd+3}], {so} offen offset:{2*ps*j if j<8 else 0}')
def ksplit(name,W,wbytes,Rn,Kr):
    k=K(name); S=[(4,W,wbytes),(8,Rn),(12,'PART')]; Kc=Kr//4
    start(k,256,S); gprolog(k,288 if os.environ.get('LIN') else 1152,Kr)
    k.e('s_and_b32 s27, s2, 3','s_bfe_u32 s26, s2, 0x20003','s_bfe_u32 s25, s2, 0x10002','s_lshl_b32 s25, s25, 3','s_lshr_b32 s3, s2, 5','s_add_u32 s25, s25, s3',
        f's_mul_i32 s28, s27, {Kc*1152}','s_mul_i32 s3, s26, 288','s_add_u32 s28, s28, s3','s_mul_i32 s3, s24, 36864','s_add_u32 s28, s28, s3',
        's_lshl_b32 s34, s25, 2','s_add_u32 s34, s34, s24',f's_mul_i32 s29, s34, {Kr*64}',f's_mul_i32 s3, s27, {Kc*32}','s_add_u32 s29, s29, s3',
        's_mul_i32 s35, s34, 36864','s_mul_i32 s3, s27, 2359296','s_add_u32 s35, s35, s3','s_mul_i32 s3, s26, 4608','s_add_u32 s35, s35, s3')
    if os.environ.get('LIN'): k.e('s_lshl_b32 s28, s27, 2','s_add_u32 s28, s28, s26',f's_mul_i32 s28, s28, {Kc*288}','s_add_u32 s28, s28, s30')
    start2(k,S); gmain(k,Kc//32,lambda S:36864 if os.environ.get('LIN') else 147456,16,Kc//32,lambda i:(24,i==0),lambda:eaddr(k,256,16,18432))
    packswap(k,24,96,fstore(k,12,'s35',256)); end(k); return finish(k,216,164)
def map34(k):
    k.e('s_and_b32 s25, s2, 3','s_lshl_b32 s25, s25, 2','s_bfe_u32 s3, s2, 0x20003','s_add_u32 s25, s25, s3','s_bfe_u32 s26, s2, 0x10002','s_lshl_b32 s26, s26, 3',
        's_lshr_b32 s3, s2, 5','s_add_u32 s26, s26, s3','s_lshl_b32 s34, s25, 2','s_add_u32 s34, s34, s24',
        's_lshl_b32 s36, s34, 4','s_add_u32 s36, s36, s26','s_mul_i32 s37, s36, 9216','v_lshlrev_b32 v20, 4, v1')
def k4():
    k=K('k4_kernel'); S=[(4,'Z2'),(8,'WSP'),(12,'Y'),(16,'Z1'),(20,B_BSP,4096)]
    start(k,256,S); gprolog(k,288,2048); map34(k)
    k.e('s_mul_i32 s28, s26, 589824','s_add_u32 s28, s28, s30','s_lshl_b32 s29, s34, 17','s_mul_i32 s35, s34, 147456','s_mul_i32 s3, s26, 4608','s_add_u32 s35, s35, s3','s_lshl_b32 s38, s34, 6')
    start2(k,S)
    def pre():
        k.e('v_lshlrev_b32 v21, 1, v13')
        for tt in range(2): k.vmop(f'buffer_load_ushort v{22+tt}, v21, s[20:23], s38 offen offset:{32*tt}','e')
        for j in range(9):
            k.vmop(f'buffer_load_dwordx4 v[{108+4*j}:{111+4*j}], v20, s[16:19], s37 offen offset:{1024*(j%4)}','e')
            if j%4==3: k.e('s_add_u32 s37, s37, 4096')
        eaddr(k,256,16,73728)
    gmain(k,64,lambda S:36864,16,64,lambda i:(24,i==0),pre)
    k.e('v_lshlrev_b32 v22, 16, v22','v_lshlrev_b32 v23, 16, v23')
    for j in range(9):
        for tt in range(2):
            for i in range(4):
                a=24+8*j+4*tt+i; z=108+4*j+2*tt+i//2
                k.e(f'v_add_f32 v{a}, v{a}, v{22+tt}',f'v_and_b32 v17, 0xffff0000, v{z}' if i&1 else f'v_lshlrev_b32 v17, 16, v{z}',f'v_mul_f32 v{a}, v{a}, v17')
    packswap(k,24,96,fstore(k,12,'s35',256)); end(k); return finish(k,216,164)
def gelu(acc,i,t):
    a=f'v[{acc+i}:{acc+i+1}]'; T=f'v[{t}:{t+1}]'
    return [f'v_pk_mul_f32 {T}, {a}, {a}',f'v_pk_fma_f32 {T}, {T}, v[180:181], v[182:183]',f'v_pk_mul_f32 {T}, {T}, {a}',f'v_exp_f32 v{t}, v{t}',f'v_exp_f32 v{t+1}, v{t+1}',
            f'v_pk_add_f32 {T}, {T}, v[184:185]',f'v_rcp_f32 v{t}, v{t}',f'v_rcp_f32 v{t+1}, v{t+1}',f'v_pk_mul_f32 {a}, {a}, {T}']
def gelu_all(k,acc):
    for i in range(0,72,8):
        for st in zip(*[gelu(acc,i+2*q,168+2*q) for q in range(4)]): k.e(*st)
def k3():
    k=K('k3_kernel'); S=[(4,B_WIN,5308416),(8,'H2'),(12,'Z2'),(16,'Z1'),(20,'STAT')]
    start(k,256,S); gprolog(k,9216,576); map34(k)
    k.e('s_mul_i32 s28, s26, 288','s_mul_i32 s3, s24, 294912','s_add_u32 s28, s28, s3','s_add_u32 s28, s28, 4608','s_mul_i32 s29, s34, 36864','s_mul_i32 s35, s26, 589824','s_mul_i32 s3, s34, 9216','s_add_u32 s35, s35, s3',
        's_lshl_b32 s38, s36, 8','s_lshl_b32 s40, s34, 12','v_lshlrev_b32 v21, 2, v1',
        f's_mov_b32 s3, {1179648}',f's_mov_b32 s39, {(1179648-5308416-4608)&0xffffffff}','s_cmp_ge_u32 s24, 2','s_cselect_b32 s41, s39, s3','s_cselect_b32 s42, s3, s39')
    start2(k,S)
    def pre():
        k.e('v_and_b32 v22, 3, v13','v_bfe_u32 v18, v13, 2, 1','v_lshl_add_u32 v22, v18, 3, v22','v_bfe_u32 v18, v13, 3, 1','v_lshl_add_u32 v22, v18, 2, v22')
        eaddr(k,16,288,4608,22); c1=2*0.7978845608028654*1.4426950408889634
        for r,v in ((180,-c1*0.044715),(182,-c1),(184,1.0)): k.e(f'v_mov_b32 v{r}, {fb(v)}',f'v_mov_b32 v{r+1}, {fb(v)}')
    def hook(i):
        if i==18:
            stamp(k); gelu_all(k,24)
            for tt in range(2):
                for q in range(18):
                    a=24+8*(q//2)+4*tt+2*(q%2); A=f'v[{a}:{a+1}]'; s1=f'v[{168+4*tt}:{169+4*tt}]'; s2=f'v[{170+4*tt}:{171+4*tt}]'
                    if q==0: k.e(f'v_mov_b32 v{168+4*tt}, v{a}',f'v_mov_b32 v{169+4*tt}, v{a+1}',f'v_pk_mul_f32 {s2}, {A}, {A}')
                    else: k.e(f'v_pk_add_f32 {s1}, {s1}, {A}',f'v_pk_fma_f32 {s2}, {A}, {A}, {s2}')
            k.e('v_add_f32 v168, v168, v169','v_add_f32 v170, v170, v171','v_add_f32 v172, v172, v173','v_add_f32 v174, v174, v175',
                'v_permlane16_swap_b32 v168, v172','v_permlane16_swap_b32 v170, v174','v_add_f32 v168, v168, v172','v_add_f32 v170, v170, v174',
                'v_permlane32_swap_b32 v168, v170','v_add_f32 v168, v168, v170','v_min_u32 v186, -2, v168')
            k.vmop('buffer_store_dword v186, v21, s[20:23], s38 offen sc0 sc1','st'); stamp(k)
    gmain(k,36,lambda S:{3:'s41',4:'s42'}.get(S,1179648),18,18,lambda i:(24 if i<18 else 96,i%18==0),pre,hook)
    def poll():
        for n in range(16): k.e(f'buffer_load_dword v{188+n}, v21, s[20:23], s40 offen offset:{256*n} sc0 sc1')
    poll(); gelu_all(k,96)
    for j in range(9):
        t=168+4*(j%3)
        for q in range(4): k.e(f'v_cvt_pk_bf16_f32 v{t+q}, v{96+8*j+2*q}, v{97+8*j+2*q}')
        k.e(f'buffer_store_dwordx4 v[{t}:{t+3}], v20, s[16:19], s37 offen offset:{1024*(j%4)}')
        if j%4==3: k.e('s_add_u32 s37, s37, 4096')
    stamp(k); k.e('s_waitcnt vmcnt(9)','k3_chk:','v_max3_u32 v187, v188, v189, v190')
    for n in range(3,15,2): k.e(f'v_max3_u32 v187, v187, v{188+n}, v{189+n}')
    k.e('v_max_u32 v187, v187, v203','v_cmp_eq_u32 vcc, -1, v187','s_cbranch_vccz k3_go','s_sleep 2'); poll(); k.e('s_waitcnt vmcnt(0)','s_branch k3_chk','k3_go:'); stamp(k)
    for n in range(1,16): k.e(f'v_add_f32 v188, v188, v{188+n}')
    k.e(f'v_mul_f32 v188, {fb(1/2304)}, v188','v_mov_b32 v189, v188','v_permlane32_swap_b32 v188, v189','v_fma_f32 v189, -v188, v188, v189','v_max_f32 v189, 0, v189',
        f'v_add_f32 v189, {fb(1e-5)}, v189','v_rsq_f32 v190, v189','v_mul_f32 v192, v188, v190','v_sub_f32 v192, 0, v192','v_mov_b32 v191, v190','v_mov_b32 v193, v192',
        'v_permlane16_swap_b32 v190, v191','v_permlane16_swap_b32 v192, v193')
    for i in range(72):
        tt=(i//4)%2; k.e(f'v_fma_f32 v{24+i}, v{24+i}, v{190+tt}, v{192+tt}')
    packswap(k,24,96,fstore(k,12,'s35',16)); end(k); return finish(k,216,180)
```
